```python
import torch

def _softmax(x, axis=-1):
    return torch.softmax(x, dim=axis)

def _gelu(x):
    return torch.nn.functional.gelu(x, approximate='tanh')

def _silu(x):
    return torch.nn.functional.silu(x)

def _sigmoid(x):
    return torch.sigmoid(x)

def _layernorm(x, axis=-1, eps=1e-05):
    m = x.mean(dim=axis, keepdim=True)
    v = x.var(dim=axis, keepdim=True, unbiased=False)
    return (x - m) / torch.sqrt(v + eps)

def _scatter_add(tgt, idx, src, axis=0):
    return tgt.clone().index_add_(axis, idx, src)

def _segment_sum(src, seg, n):
    out = torch.zeros((n,) + src.shape[1:], dtype=src.dtype)
    return out.index_add_(0, seg, src)

def _pad(x, pw):
    flat = tuple((v for pair in reversed(pw) for v in pair))
    return torch.nn.functional.pad(x, flat)
kernel_name = 'gated_mix__memory_aug_recurrent_mem_tr__ssm_conv_s4__prompt'

def setup_inputs():

    _w = lambda a: (lambda t: t.to(torch.bfloat16) if t.is_floating_point() else t)(torch.as_tensor(a))

    def _A_setup():
        B, S, Dm = (1, 2048, 640)
        H, Dh = (32, 128)
        M, seg = (8, 32)
        seg = min(seg, S)
        S = S // seg * seg
        return {'x': _w((lambda *s: torch.randn(*s, dtype=torch.bfloat16) * 0.05)(B, S, Dm)), 'mem0': _w((lambda *s: torch.randn(*s, dtype=torch.bfloat16) * 0.4)(B, M, Dm)), 'Wq': _w((lambda *s: torch.randn(*s, dtype=torch.bfloat16) * 6.4)(Dm, H, Dh) * Dm ** (-0.5)), 'Wk': _w((lambda *s: torch.randn(*s, dtype=torch.bfloat16) * 6.4)(Dm, H, Dh) * Dm ** (-0.5)), 'Wv': _w((lambda *s: torch.randn(*s, dtype=torch.bfloat16) * 0.4)(Dm, H, Dh) * Dm ** (-0.5)), 'Wo': _w((lambda *s: torch.randn(*s, dtype=torch.bfloat16) * 0.4)(H, Dh, Dm) * (H * Dh) ** (-0.5)), 'seg_len': seg}
    _A_in = _A_setup()

    def _B_setup():
        B, L, D, N = (1, 2048, 640, 128)
        A_re = -(lambda _x: torch.exp(torch.as_tensor(_x)))((lambda *s: torch.randn(*s, dtype=torch.bfloat16) * 6.4)(D, N))
        A_im = torch.pi * (lambda *s: torch.randn(*s, dtype=torch.bfloat16) * 0.05)(D, N)
        B_re = (lambda *s: torch.randn(*s, dtype=torch.bfloat16) * 0.1)(D, N)
        B_im = (lambda *s: torch.randn(*s, dtype=torch.bfloat16) * 0.1)(D, N)
        C_re = (lambda *s: torch.randn(*s, dtype=torch.bfloat16) * 0.1)(D, N)
        C_im = (lambda *s: torch.randn(*s, dtype=torch.bfloat16) * 0.1)(D, N)
        log_dt = (lambda *s: torch.randn(*s, dtype=torch.bfloat16) * 0.05)(D) * 0.5 - 4.0
        Dskip = (lambda *s: torch.randn(*s, dtype=torch.bfloat16) * 0.05)(D)
        return {'u': _w((lambda *s: torch.randn(*s, dtype=torch.bfloat16) * 0.05)(B, L, D)), 'A_re': _w(A_re), 'A_im': _w(A_im), 'B_re': _w(B_re), 'B_im': _w(B_im), 'C_re': _w(C_re), 'C_im': _w(C_im), 'log_dt': _w(log_dt), 'Dskip': _w(Dskip)}
    _B_in = _B_setup()
    return {'A_x': _A_in['x'], 'A_mem0': _A_in['mem0'], 'A_Wq': _A_in['Wq'], 'A_Wk': _A_in['Wk'], 'A_Wv': _A_in['Wv'], 'A_Wo': _A_in['Wo'], 'A_seg_len': _A_in['seg_len'], 'B_u': _B_in['u'], 'B_A_re': _B_in['A_re'], 'B_A_im': _B_in['A_im'], 'B_B_re': _B_in['B_re'], 'B_B_im': _B_in['B_im'], 'B_C_re': _B_in['C_re'], 'B_C_im': _B_in['C_im'], 'B_log_dt': _B_in['log_dt'], 'B_Dskip': _B_in['Dskip'], 'gate_w': _w((lambda *s: torch.randn(*s, dtype=torch.bfloat16) * 0.05)(640) * 16.0)}

def reference(A_x, A_mem0, A_Wq, A_Wk, A_Wv, A_Wo, A_seg_len, B_u, B_A_re, B_A_im, B_B_re, B_B_im, B_C_re, B_C_im, B_log_dt, B_Dskip, gate_w):

    def _A_ref(x, mem0, Wq, Wk, Wv, Wo, seg_len):
        B, S, Dm = x.shape
        H, Dh = (Wq.shape[1], Wq.shape[2])
        M = mem0.shape[1]
        scale = Dh ** (-0.5)
        n_seg = S // seg_len
        L = M + seg_len
        idx = torch.arange(L)
        mask = (idx[:, None] < M) | (idx[:, None] >= idx[None, :])
        mem = mem0
        outs = []
        for s in range(n_seg):
            xs = x[:, s * seg_len:(s + 1) * seg_len, :].clone()
            h = torch.concatenate([mem, xs], axis=1)
            q = torch.einsum('btd,dhe->bhte', h, Wq)
            k = torch.einsum('btd,dhe->bhte', h, Wk)
            v = torch.einsum('btd,dhe->bhte', h, Wv)
            scores = torch.einsum('bhqe,bhke->bhqk', q, k) * scale
            scores = torch.where(mask[None, None], scores, -1000000000.0)
            p = _softmax(scores, axis=-1)
            o = torch.einsum('bhqk,bhke->bhqe', p, v)
            o = torch.einsum('bhte,hed->btd', o, Wo)
            mem = o[:, :M, :].clone()
            outs.append(o[:, M:, :])
        return torch.concatenate(outs, axis=1)

    def _B_ref(u, A_re, A_im, B_re, B_im, C_re, C_im, log_dt, Dskip):
        Bsz, L, D = u.shape
        dt = torch.exp(log_dt)[:, None]
        A = A_re + 1j * A_im
        Bc = B_re + 1j * B_im
        Cc = C_re + 1j * C_im
        logdA = dt * A
        dB = dt * Bc
        l = (lambda x, dt: x.to(dt))(torch.arange(L), A_re.dtype)
        P = torch.exp(logdA[:, :, None] * l[None, None, :])
        K = torch.einsum('dn,dnl,dn->dl', Cc, P, dB).real
        L2 = 2 * L
        Kp = _pad(K, ((0, 0), (0, L)))
        up = (lambda x, *d: x.permute(*d))(u, 0, 2, 1)
        up = _pad(up, ((0, 0), (0, 0), (0, L)))
        Kf = (lambda x, axes=(-2, -1): torch.fft.rfft2(x.float(), dim=axes))(Kp[:, None, :], axes=(-2, -1))
        Uf = (lambda x, axes=(-2, -1): torch.fft.rfft2(x.float(), dim=axes))(up[:, :, None, :], axes=(-2, -1))
        Yf = Uf * Kf[None, :, :, :]
        y = (lambda x, s, axes=(-2, -1): torch.fft.irfft2(x, s=s, dim=axes).to(torch.bfloat16))(Yf, (1, L2), axes=(-2, -1))[:, :, 0, :L]
        y = (lambda x, *d: x.permute(*d))(y, 0, 2, 1) + u * Dskip[None, None, :]
        return y
    x = A_x
    g = _sigmoid((x * gate_w).sum(-1, keepdims=True))
    a = _A_ref(x, A_mem0, A_Wq, A_Wk, A_Wv, A_Wo, A_seg_len)
    b = _B_ref(x, B_A_re, B_A_im, B_B_re, B_B_im, B_C_re, B_C_im, B_log_dt, B_Dskip)
    return g * a + (1 - g) * b
```

```python
from common import *
import math, struct
NV=168
V_L16=1; V_L8=2; V_T=3; V_T2=4; V_M=5; V_SUM=6; V_NEG=7
V_S=8
V_P=28
V_Q=44
V_K=76
V_KM=108
V_V=124
V_VM=156
NV=172
V_O=44
S_WS=8; S_T0=12; S_T1=13; S_SC=14; S_L2E=15; S_B=16; S_MKD=20
S_MKM=28
def f32(x): return "0x%08x"%struct.unpack('<I',struct.pack('<f',x))[0]

def att_body(a, ws, sTask):
    a(f"s_lshl_b32 s{S_B}, s{sTask}, 13")
    a(f"s_add_u32 s{S_T0}, s{S_B}, {WS_QX}")
    a(f"s_add_u32 s{S_T1}, s{S_T0}, 4096")
    for i in range(8):
        a(f"buffer_load_dwordx4 {vr(V_Q+4*i,4)}, v{V_L16}, {ws}, s{S_T0 if i<4 else S_T1} offen offset:{(i&3)*1024}")
    a(f"s_add_u32 s{S_T0}, s{S_B}, {WS_KX}")
    a(f"s_add_u32 s{S_T1}, s{S_T0}, 4096")
    for i in range(8):
        a(f"buffer_load_dwordx4 {vr(V_K+4*i,4)}, v{V_L16}, {ws}, s{S_T0 if i<4 else S_T1} offen offset:{(i&3)*1024}")
    a(f"s_lshl_b32 s{S_T0}, s{sTask}, 12")
    a(f"s_add_u32 s{S_T1}, s{S_T0}, {WS_VM}")
    a(f"s_add_u32 s{S_T0}, s{S_T0}, {WS_KM}")
    for i in range(4):
        a(f"buffer_load_dwordx4 {vr(V_KM+4*i,4)}, v{V_L16}, {ws}, s{S_T0} offen offset:{i*1024}")
    for i in range(8):
        a(f"buffer_load_dwordx2 {vr(V_VM+2*i,2)}, v{V_L8}, {ws}, s{S_T1} offen offset:{i*512}")
    a(f"s_add_u32 s{S_T0}, s{S_B}, {WS_VX}")
    a(f"s_add_u32 s{S_T1}, s{S_T0}, 4096")
    for i in range(8):
        a(f"buffer_load_dwordx4 {vr(V_V+4*i,4)}, v{V_L16}, {ws}, s{S_T0 if i<4 else S_T1} offen offset:{(i&3)*1024}")
    a("s_waitcnt vmcnt(16)")
    St={(0,0):V_S,(0,1):V_S+4,(1,0):V_S+8,(1,1):V_S+12,(1,2):V_S+16}
    for ks in range(4):
        for (tt,t),r in St.items():
            A = V_KM+4*ks if t==0 else V_K+((t-1)*4+ks)*4
            a(f"v_mfma_f32_16x16x32_bf16 {vr(r,4)}, {vr(A,4)}, {vr(V_Q+(tt*4+ks)*4,4)}, {'0' if ks==0 else vr(r,4)}")
    a("s_nop 7")
    def rnd(r0,r1):
        a(f"v_cvt_pk_bf16_f32 v{V_T}, v{r0}, v{r1}")
        a(f"v_lshlrev_b32 v{r0}, 16, v{V_T}")
        a(f"v_and_b32 v{r1}, 0xffff0000, v{V_T}")
    for r in range(V_S,V_S+20,2):
        rnd(r,r+1)
        a(f"v_mul_f32 v{r}, s{S_SC}, v{r}")
        a(f"v_mul_f32 v{r+1}, s{S_SC}, v{r+1}")
        rnd(r,r+1)
    for tt in range(2):
        for r in range(4):
            a(f"v_cndmask_b32 v{St[(tt,0)]+r}, v{V_NEG}, v{St[(tt,0)]+r}, s[{S_MKM}:{S_MKM+1}]")
            d=St[(tt,tt+1)]+r
            a(f"v_cndmask_b32 v{d}, v{V_NEG}, v{d}, s[{S_MKD+2*r}:{S_MKD+2*r+1}]")
    PX=[V_P,V_P+8]; PM=[V_P+4,V_P+12]
    for tt in range(2):
        regs=[St[(tt,t)]+r for t in range(tt+2) for r in range(4)]
        a(f"v_max3_f32 v{V_M}, v{regs[0]}, v{regs[1]}, v{regs[2]}")
        i=3
        while i<len(regs):
            if i+1<len(regs): a(f"v_max3_f32 v{V_M}, v{V_M}, v{regs[i]}, v{regs[i+1]}"); i+=2
            else: a(f"v_max_f32 v{V_M}, v{V_M}, v{regs[i]}"); i+=1
        for op in ("v_permlane32_swap_b32","v_permlane16_swap_b32"):
            a(f"v_mov_b32 v{V_T}, v{V_M}")
            a("s_nop 1")
            a(f"{op} v{V_M}, v{V_T}")
            a(f"v_max_f32 v{V_M}, v{V_M}, v{V_T}")
        for r in regs:
            a(f"v_sub_f32 v{r}, v{r}, v{V_M}")
            a(f"v_mul_f32 v{r}, s{S_L2E}, v{r}")
            a(f"v_exp_f32 v{r}, v{r}")
        a("s_nop 0")
        a(f"v_add_f32 v{V_SUM}, v{regs[0]}, v{regs[1]}")
        for r in regs[2:]: a(f"v_add_f32 v{V_SUM}, v{V_SUM}, v{r}")
        for op in ("v_permlane32_swap_b32","v_permlane16_swap_b32"):
            a(f"v_mov_b32 v{V_T}, v{V_SUM}")
            a("s_nop 1")
            a(f"{op} v{V_SUM}, v{V_T}")
            a(f"v_add_f32 v{V_SUM}, v{V_SUM}, v{V_T}")
        a(f"v_rcp_f32 v{V_SUM}, v{V_SUM}")
        a("s_nop 0")
        for r in regs: a(f"v_mul_f32 v{r}, v{r}, v{V_SUM}")
        s0=St[(tt,0)]; s1=St[(tt,1)]
        a(f"v_cvt_pk_bf16_f32 v{PM[tt]}, v{s0}, v{s0+1}")
        a(f"v_cvt_pk_bf16_f32 v{PM[tt]+1}, v{s0+2}, v{s0+3}")
        a(f"v_cvt_pk_bf16_f32 v{PX[tt]}, v{s1}, v{s1+1}")
        a(f"v_cvt_pk_bf16_f32 v{PX[tt]+1}, v{s1+2}, v{s1+3}")
        if tt==0:
            a(f"v_mov_b32 v{PX[0]+2}, 0"); a(f"v_mov_b32 v{PX[0]+3}, 0")
        else:
            s2=St[(1,2)]
            a(f"v_cvt_pk_bf16_f32 v{PX[1]+2}, v{s2}, v{s2+1}")
            a(f"v_cvt_pk_bf16_f32 v{PX[1]+3}, v{s2+2}, v{s2+3}")
    a("s_waitcnt vmcnt(0)")
    for j in range(8):
        for tt in range(2):
            o=vr(V_O+(j*2+tt)*4,4)
            a(f"v_mfma_f32_16x16x32_bf16 {o}, {vr(V_V+4*j,4)}, {vr(PX[tt],4)}, 0")
    for j in range(8):
        for tt in range(2):
            o=vr(V_O+(j*2+tt)*4,4)
            a(f"v_mfma_f32_16x16x16_bf16 {o}, {vr(V_VM+2*j,2)}, {vr(PM[tt],2)}, {o}")
    a(f"s_add_u32 s{S_T0}, s{S_B}, {WS_OX}")
    a(f"s_add_u32 s{S_T1}, s{S_T0}, 4096")
    a("s_nop 7")
    for tt in range(2):
        for ks in range(4):
            A=V_O+((2*ks)*2+tt)*4; B=V_O+((2*ks+1)*2+tt)*4
            P=V_V+(tt*4+ks)*4
            a(f"v_cvt_pk_bf16_f32 v{P}, v{A}, v{A+1}")
            a(f"v_cvt_pk_bf16_f32 v{P+1}, v{A+2}, v{A+3}")
            a(f"v_cvt_pk_bf16_f32 v{P+2}, v{B}, v{B+1}")
            a(f"v_cvt_pk_bf16_f32 v{P+3}, v{B+2}, v{B+3}")
            a(f"buffer_store_dwordx4 {vr(P,4)}, v{V_L16}, {ws}, s{S_T0 if tt==0 else S_T1} offen offset:{ks*1024}")

def att_setup(a):
    a(f"v_lshlrev_b32 v{V_L8}, 3, v{V_L16}")
    a(f"v_lshrrev_b32 v{V_T}, 4, v{V_L16}")
    a(f"v_and_b32 v{V_T2}, 15, v{V_L16}")
    a(f"v_cmp_le_u32 s[{S_MKM}:{S_MKM+1}], 32, v{V_L16}")
    a(f"v_lshlrev_b32 v{V_T}, 2, v{V_T}")
    for r in range(4):
        a(f"v_add_u32 v{V_M}, {r}, v{V_T}")
        a(f"v_cmp_le_u32 s[{S_MKD+2*r}:{S_MKD+2*r+1}], v{V_M}, v{V_T2}")
    a(f"v_lshlrev_b32 v{V_L16}, 4, v{V_L16}")
    a(f"v_mov_b32 v{V_NEG}, {f32(-1e30)}")
    a(f"s_mov_b32 s{S_SC}, {f32(128**-0.5)}")
    a(f"s_mov_b32 s{S_L2E}, {f32(math.log2(math.e))}")

def gen_att(name="att_kernel"):
    a=Asm()
    ws=f"s[{S_WS}:{S_WS+3}]"
    a("s_cmp_ge_u32 s2, 512")
    a("s_cbranch_scc1 Latt_end")
    a(f"s_load_dwordx2 s[4:5], s[0:1], {ARG['ws']}")
    a(f"v_lshrrev_b32 v{V_T}, 6, v0")
    a(f"v_and_b32 v{V_L16}, 63, v0")
    a(f"v_readfirstlane_b32 s3, v{V_T}")
    att_setup(a)
    a("s_lshl_b32 s6, s2, 2")
    a("s_add_u32 s6, s6, s3")
    a("s_waitcnt lgkmcnt(0)")
    srd(a,S_WS,4,SZ['ws'])
    att_body(a,ws,6)
    a.label("Latt_end")
    a("s_endpgm")
    return kernel_header(name)+a.text(), kernel_desc(name,NV)
```

```python
import sys
from common import *
import rec
def build(parts, launches, path):
    hdr = open("cdna_kernels/"+KNAME+".s.ref").read().split("; Override launch")[0]
    s = hdr
    for k,g,b,l in launches:
        s += f"; @launch kernel={k} grid=({g},1,1) block=({b},1,1) lds={l}\n"
    s += '.amdgcn_target "amdgcn-amd-amdhsa--gfx950"\n'
    for code,desc in parts: s += code
    for code,desc in parts: s += desc
    open(path,"w").write(s)
if __name__=="__main__":
    launches=[("init_kernel",(RING_BYTES+4095)//4096,256,0),("rec_kernel",256,320,rec.LDS_BYTES)]
    build([rec.gen_init(), rec.gen_rec()],launches,"rec_test.s")
    rec.PROF=True
    build([rec.gen_init(), rec.gen_rec()],launches,"rec_prof.s")
```

```python
KNAME = "gated_mix__memory_aug_recurrent_mem_tr__ssm_conv_s4__prompt"
MB = 1 << 20
ARG = dict(x=0, mem0=8, Wq=16, Wk=24, Wv=32, Wo=40, seg=48, u=56, Are=64, Aim=72, Bre=80, Bim=88,
           Cre=96, Cim=104, logdt=112, Dskip=120, gate=128, out=136, dbg=144, ws=152)
SZ = dict(x=2048*640*2, mem0=8*640*2, Wq=640*4096*2, Wk=640*4096*2, Wv=640*4096*2, Wo=4096*640*2,
          Are=640*128*2, Aim=640*128*2, Bre=640*128*2, Bim=640*128*2, Cre=640*128*2, Cim=640*128*2,
          logdt=640*2, Dskip=640*2, gate=640*2, out=2048*640*2, dbg=256, ws=256*MB)
WS_QX = 0
WS_KX = 16*MB
WS_VX = 32*MB
WS_KM = 48*MB
WS_VM = 56*MB
WS_RING = 64*MB
RING_D  = WS_RING
RING_A1 = RING_D + 4*8*10240
RING_A2 = RING_A1 + 4*32*4096
RING_C  = RING_A2 + 4*32*2048
RING_END = RING_C + 64*32*8*640
RING_BYTES = RING_END - WS_RING
WS_BY = 80*MB
WS_G  = 84*MB
WS_KS = 88*MB
WS_OX = 96*MB

class Asm:
    def __init__(self):
        self.lines = []
        self.nlab = 0
    def __call__(self, s):
        for l in s.strip("\n").split("\n"):
            self.lines.append("    " + l.strip())
    def label(self, name):
        self.lines.append(name + ":")
    def newlab(self, p="L"):
        self.nlab += 1
        return f"{p}_{self.nlab}"
    def comment(self, s):
        self.lines.append("    ; " + s)
    def text(self):
        return "\n".join(self.lines) + "\n"

def vr(a, n=1):
    return f"v{a}" if n == 1 else f"v[{a}:{a+n-1}]"
def sr(a, n=1):
    return f"s{a}" if n == 1 else f"s[{a}:{a+n-1}]"

def srd(a, d, ptr, nbytes):
    a(f"s_mov_b32 s{d}, s{ptr}")
    a(f"s_and_b32 s{d+1}, s{ptr+1}, 0xffff")
    a(f"s_mov_b32 s{d+2}, {nbytes}")
    a(f"s_mov_b32 s{d+3}, 0x00020000")

def kernel_header(name):
    return f""".text
.globl {name}
.p2align 8
.type {name},@function
{name}:
"""
def kernel_desc(name, vgpr, sgpr=102):
    acc = (vgpr + 3)//4*4
    return f""".section .rodata,"a"
.p2align 6
.amdhsa_kernel {name}
  .amdhsa_next_free_vgpr {vgpr}
  .amdhsa_next_free_sgpr {sgpr}
  .amdhsa_accum_offset {acc}
  .amdhsa_group_segment_fixed_size 0
  .amdhsa_kernarg_size 160
  .amdhsa_user_sgpr_count 2
  .amdhsa_user_sgpr_kernarg_segment_ptr 1
  .amdhsa_system_sgpr_workgroup_id_x 1
  .amdhsa_float_denorm_mode_32 3
.end_amdhsa_kernel
"""
```

```python
from common import *
import math, struct
def f32(x): return "0x%08x"%struct.unpack('<I',struct.pack('<f',x))[0]
LDS_BYTES=81920
NV=160
S_WS=8; S_WO=12; S_OUT=16; S_W=20; S_SG=21; S_KH=22; S_CG=23; S_SEG=24; S_T0=25; S_T1=26; S_I=27
S_WOFF=28; S_OOFF=29; S_LW=30; S_LR=31
V_L16=4; V_DM=5
V_TR=10; V_TR1=11; V_T=12; V_T2=13
V_WF=16
V_ACC=56
V_O=96
def gen_opj(name="opj_kernel"):
    a=Asm()
    ws=f"s[{S_WS}:{S_WS+3}]"
    a("s_cmp_ge_u32 s2, 256")
    a("s_cbranch_scc1 Lopj_end")
    a(f"s_load_dwordx2 s[4:5], s[0:1], {ARG['ws']}")
    a(f"s_load_dwordx2 s[6:7], s[0:1], {ARG['Wo']}")
    a(f"s_load_dwordx2 s[32:33], s[0:1], {ARG['out']}")
    a("v_lshrrev_b32 v2, 6, v0")
    a("v_and_b32 v1, 63, v0")
    a(f"v_readfirstlane_b32 s{S_W}, v2")
    a("v_lshrrev_b32 v2, 4, v1")
    a("v_and_b32 v3, 15, v1")
    a(f"v_lshlrev_b32 v{V_L16}, 4, v1")
    a(f"s_and_b32 s{S_SG}, s{S_W}, 1")
    a(f"s_lshr_b32 s{S_KH}, s{S_W}, 1")
    a(f"s_and_b32 s{S_CG}, s2, 7")
    a(f"s_lshr_b32 s{S_SEG}, s2, 3")
    a(f"s_lshl_b32 s{S_SEG}, s{S_SEG}, 1")
    a(f"s_add_u32 s{S_SEG}, s{S_SEG}, s{S_SG}")
    a(f"s_mov_b32 s{S_T0}, 0x1999999a")
    for i in range(5):
        a(f"v_add_u32 v{V_T}, {i*64}, v1")
        a(f"v_mul_hi_u32 v{V_T2}, v{V_T}, s{S_T0}")
        a(f"v_mul_u32_u24 v{V_DM+i}, 10, v{V_T2}")
        a(f"v_sub_u32 v{V_T}, v{V_T}, v{V_DM+i}")
        a(f"v_mul_u32_u24 v{V_T2}, 1280, v{V_T2}")
        a(f"v_lshl_add_u32 v{V_DM+i}, v{V_T}, 4, v{V_T2}")
    a(f"v_lshrrev_b32 v{V_T}, 2, v3")
    a(f"v_lshl_add_u32 v{V_T}, v2, 2, v{V_T}")
    a(f"v_mul_u32_u24 v{V_T}, 160, v{V_T}")
    a(f"v_and_b32 v{V_T2}, 3, v3")
    a(f"v_lshl_add_u32 v{V_TR}, v{V_T2}, 4, v{V_T}")
    a(f"v_lshl_add_u32 v{V_TR1}, v{V_T2}, 3, v{V_T}")
    a(f"s_mul_i32 s{S_LR}, s{S_KH}, 10240")
    a(f"v_add_u32 v{V_TR}, s{S_LR}, v{V_TR}")
    a(f"v_add_u32 v{V_TR1}, s{S_LR}, v{V_TR1}")
    a(f"s_mul_i32 s{S_T0}, s{S_SG}, 5120")
    a(f"s_add_u32 s{S_LW}, s{S_LR}, s{S_T0}")
    a(f"s_lshl_b32 s{S_WOFF}, s{S_KH}, 6")
    a(f"s_add_u32 s{S_WOFF}, s{S_WOFF}, s{S_SG}")
    a(f"s_mul_i32 s{S_WOFF}, s{S_WOFF}, {32*1280}")
    a(f"s_mul_i32 s{S_T0}, s{S_CG}, 160")
    a(f"s_add_u32 s{S_WOFF}, s{S_WOFF}, s{S_T0}")
    a(f"s_lshl_b32 s{S_OOFF}, s{S_SEG}, 1")
    a(f"s_add_u32 s{S_OOFF}, s{S_OOFF}, s{S_KH}")
    a(f"s_lshl_b32 s{S_OOFF}, s{S_OOFF}, 17")
    a(f"s_add_u32 s{S_OOFF}, s{S_OOFF}, {WS_OX}")
    a("s_waitcnt lgkmcnt(0)")
    srd(a,S_WS,4,SZ['ws']); srd(a,S_WO,6,SZ['Wo']); srd(a,S_OUT,32,SZ['out'])
    def issue(slot):
        for i in range(5):
            a(f"s_add_u32 m0, s{S_LW}, {slot*20480+i*1024}")
            a("s_nop 0")
            a(f"buffer_load_dwordx4 v{V_DM+i}, s[{S_WO}:{S_WO+3}], s{S_WOFF} offen lds")
        a(f"s_add_u32 s{S_T0}, s{S_OOFF}, 4096")
        for k in range(2):
            for tt in range(2):
                a(f"buffer_load_dwordx4 {vr(V_O+slot*16+(k*2+tt)*4,4)}, v{V_L16}, {ws}, s{S_OOFF if tt==0 else S_T0} offen offset:{((slot&1)*2+k)*1024}")
        a(f"s_add_u32 s{S_WOFF}, s{S_WOFF}, {64*1280}")
        if slot&1: a(f"s_add_u32 s{S_OOFF}, s{S_OOFF}, 8192")
    issue(0); issue(1); issue(2)
    for i in range(40): a(f"v_mov_b32 v{V_ACC+i}, 0")
    a(f"s_mov_b32 s{S_I}, 0")
    a.label("Lopj_loop")
    for slot in range(4):
        a("s_waitcnt vmcnt(18)")
        a("s_barrier")
        for k in range(2):
            for ct in range(5):
                r=V_WF+(k*5+ct)*4
                base=slot*20480+k*5120
                if ct<4: ad=V_TR; o=base+(ct>>1)*64+(ct&1)*8
                else: ad=V_TR1; o=base+128
                if o+16*160 < 65536:
                    a(f"ds_read_b64_tr_b16 {vr(r,2)}, v{ad} offset:{o}")
                    a(f"ds_read_b64_tr_b16 {vr(r+2,2)}, v{ad} offset:{o+16*160}")
                else:
                    a(f"v_add_u32 v{V_T}, {slot*20480}, v{ad}")
                    a(f"ds_read_b64_tr_b16 {vr(r,2)}, v{V_T} offset:{o-slot*20480}")
                    a(f"ds_read_b64_tr_b16 {vr(r+2,2)}, v{V_T} offset:{o-slot*20480+16*160}")
        issue((slot+3)&3)
        for k in range(2):
            a(f"s_waitcnt lgkmcnt({10 if k==0 else 0})")
            for ct in range(5):
                for tt in range(2):
                    acc=vr(V_ACC+(ct*2+tt)*4,4)
                    a(f"v_mfma_f32_16x16x32_bf16 {acc}, {vr(V_WF+(k*5+ct)*4,4)}, {vr(V_O+slot*16+(k*2+tt)*4,4)}, {acc}")
    a(f"s_add_u32 s{S_I}, s{S_I}, 1")
    a(f"s_cmp_lt_u32 s{S_I}, 8")
    a("s_cbranch_scc1 Lopj_loop")
    a("s_waitcnt vmcnt(0)")
    a("s_barrier")
    a(f"s_lshl_b32 s{S_T0}, s{S_W}, 13")
    a(f"v_add_u32 v{V_T}, s{S_T0}, v{V_L16}")
    a(f"s_xor_b32 s{S_T0}, s{S_T0}, 16384")
    a(f"v_add_u32 v{V_T2}, s{S_T0}, v{V_L16}")
    a(f"s_cmp_eq_u32 s{S_KH}, 0")
    a("s_cbranch_scc1 Lopj_k0")
    for ct in range(5):
        a(f"ds_write_b128 v{V_T}, {vr(V_ACC+(ct*2)*4,4)} offset:{ct*1024}")
        for r in range(4): a(f"v_mov_b32 v{V_WF+ct*4+r}, v{V_ACC+(ct*2+1)*4+r}")
    a("s_branch Lopj_j")
    a.label("Lopj_k0")
    for ct in range(5):
        a(f"ds_write_b128 v{V_T}, {vr(V_ACC+(ct*2+1)*4,4)} offset:{ct*1024}")
        for r in range(4): a(f"v_mov_b32 v{V_WF+ct*4+r}, v{V_ACC+(ct*2)*4+r}")
    a.label("Lopj_j")
    a(f"s_lshl_b32 s{S_T0}, s{S_SEG}, 1")
    a(f"s_add_u32 s{S_T0}, s{S_T0}, s{S_KH}")
    a(f"s_lshl_b32 s{S_T0}, s{S_T0}, 4")
    a(f"v_add_u32 v14, s{S_T0}, v3")
    a(f"v_lshlrev_b32 v15, 3, v14")
    a(f"s_mov_b32 s{S_T1}, {WS_G}")
    a(f"buffer_load_dwordx2 v[100:101], v15, {ws}, s{S_T1} offen")
    a("v_mul_u32_u24 v14, 1280, v14")
    a(f"s_mul_i32 s{S_T0}, s{S_CG}, 160")
    a(f"v_add_u32 v14, s{S_T0}, v14")
    a("v_lshl_add_u32 v15, v2, 3, v14")
    a("v_lshl_add_u32 v14, v2, 4, v14")
    a(f"s_mov_b32 s{S_T1}, {WS_BY}")
    a(f"buffer_load_dwordx4 v[104:107], v14, {ws}, s{S_T1} offen")
    a(f"buffer_load_dwordx4 v[108:111], v14, {ws}, s{S_T1} offen offset:64")
    a(f"buffer_load_dwordx2 v[112:113], v15, {ws}, s{S_T1} offen offset:128")
    a("s_waitcnt lgkmcnt(0)")
    a("s_barrier")
    for ct in range(5):
        a(f"ds_read_b128 {vr(V_ACC+ct*4,4)}, v{V_T2} offset:{ct*1024}")
    a("s_waitcnt lgkmcnt(0) vmcnt(0)")
    for ct in range(5):
        for h in range(2):
            x0=V_WF+ct*4+2*h; y0=V_ACC+ct*4+2*h; b=104+ct*2+h
            a(f"v_add_f32 v{x0}, v{x0}, v{y0}")
            a(f"v_add_f32 v{x0+1}, v{x0+1}, v{y0+1}")
            a(f"v_cvt_pk_bf16_f32 v120, v{x0}, v{x0+1}")
            a("v_lshlrev_b32 v121, 16, v120")
            a("v_and_b32 v122, 0xffff0000, v120")
            a("v_mul_f32 v121, v100, v121")
            a("v_mul_f32 v122, v100, v122")
            a("v_cvt_pk_bf16_f32 v120, v121, v122")
            a(f"v_lshlrev_b32 v123, 16, v{b}")
            a(f"v_and_b32 v124, 0xffff0000, v{b}")
            a("v_mul_f32 v123, v101, v123")
            a("v_mul_f32 v124, v101, v124")
            a("v_cvt_pk_bf16_f32 v123, v123, v124")
            a("v_lshlrev_b32 v121, 16, v120")
            a("v_and_b32 v122, 0xffff0000, v120")
            a("v_and_b32 v124, 0xffff0000, v123")
            a("v_lshlrev_b32 v123, 16, v123")
            a("v_add_f32 v121, v121, v123")
            a("v_add_f32 v122, v122, v124")
            a(f"v_cvt_pk_bf16_f32 v{b}, v121, v122")
    out=f"s[{S_OUT}:{S_OUT+3}]"
    a(f"buffer_store_dwordx4 v[104:107], v14, {out}, 0 offen")
    a(f"buffer_store_dwordx4 v[108:111], v14, {out}, 0 offen offset:64")
    a(f"buffer_store_dwordx2 v[112:113], v15, {out}, 0 offen offset:128")
    a.label("Lopj_end")
    a("s_endpgm")
    return kernel_header(name)+a.text(), kernel_desc(name,NV)

NRING=(RING_BYTES+4095)//4096
INIT_GRID=NRING+128
def gen_init(name="init_kernel"):
    a=Asm()
    a(f"s_load_dwordx2 s[4:5], s[0:1], {ARG['ws']}")
    a(f"s_load_dwordx2 s[6:7], s[0:1], {ARG['x']}")
    a(f"s_load_dwordx2 s[20:21], s[0:1], {ARG['gate']}")
    a(f"s_cmp_ge_u32 s2, {INIT_GRID}")
    a("s_cbranch_scc1 Linit_end")
    a(f"s_cmp_lt_u32 s2, 128")
    a("s_cbranch_scc1 Linit_gate")
    a("s_sub_u32 s3, s2, 128")
    a("s_lshl_b32 s3, s3, 12")
    a("v_lshlrev_b32 v1, 4, v0")
    a("v_add_u32 v1, s3, v1")
    for i in range(4): a(f"v_mov_b32 v{4+i}, -1")
    a("s_waitcnt lgkmcnt(0)")
    srd(a,8,4,RING_END)
    a(f"s_mov_b32 s12, {WS_RING}")
    a("buffer_store_dwordx4 v[4:7], v1, s[8:11], s12 offen")
    a("s_branch Linit_end")
    a.label("Linit_gate")
    a("v_lshrrev_b32 v1, 4, v0")
    a("s_lshl_b32 s3, s2, 4")
    a("v_add_u32 v1, s3, v1")
    a("v_and_b32 v2, 15, v0")
    a("v_lshlrev_b32 v2, 4, v2")
    a("v_mul_u32_u24 v3, 1280, v1")
    a("v_add_u32 v3, v3, v2")
    a("s_waitcnt lgkmcnt(0)")
    srd(a,8,4,SZ['ws']); srd(a,12,6,SZ['x']); srd(a,16,20,SZ['gate'])
    for i in range(5):
        a(f"buffer_load_dwordx4 {vr(8+4*i,4)}, v3, s[12:15], 0 offen offset:{i*256}")
        a(f"buffer_load_dwordx4 {vr(28+4*i,4)}, v2, s[16:19], 0 offen offset:{i*256}")
    a("v_mov_b32 v4, 0")
    a("s_waitcnt vmcnt(0)")
    for i in range(20):
        x=8+i; w=28+i
        a(f"v_lshlrev_b32 v48, 16, v{x}"); a(f"v_and_b32 v49, 0xffff0000, v{x}")
        a(f"v_lshlrev_b32 v50, 16, v{w}"); a(f"v_and_b32 v51, 0xffff0000, v{w}")
        a("v_mul_f32 v48, v48, v50"); a("v_mul_f32 v49, v49, v51")
        a("v_cvt_pk_bf16_f32 v48, v48, v49")
        a("v_and_b32 v49, 0xffff0000, v48"); a("v_lshlrev_b32 v48, 16, v48")
        a("v_add_f32 v4, v4, v48"); a("v_add_f32 v4, v4, v49")
    for sh in (8,4,2,1):
        a("s_nop 1")
        a(f"v_add_f32_dpp v4, v4, v4 row_ror:{sh} row_mask:0xf bank_mask:0xf")
    a("v_cvt_pk_bf16_f32 v4, v4, v4")
    a("v_lshlrev_b32 v4, 16, v4")
    a(f"v_mul_f32 v4, {f32(-math.log2(math.e))}, v4")
    a("v_exp_f32 v4, v4")
    a("s_nop 0")
    a("v_add_f32 v4, 1.0, v4")
    a("v_rcp_f32 v4, v4")
    a("s_nop 0")
    a("v_cvt_pk_bf16_f32 v4, v4, v4")
    a("v_lshlrev_b32 v4, 16, v4")
    a("v_sub_f32 v5, 1.0, v4")
    a("v_cvt_pk_bf16_f32 v5, v5, v5")
    a("v_lshlrev_b32 v5, 16, v5")
    a("v_lshlrev_b32 v1, 3, v1")
    a(f"s_mov_b32 s3, {WS_G}")
    a("v_cmp_eq_u32 vcc, 0, v2")
    a("s_and_saveexec_b64 s[22:23], vcc")
    a("buffer_store_dwordx2 v[4:5], v1, s[8:11], s3 offen")
    a.label("Linit_end")
    a("s_endpgm")
    return kernel_header(name)+a.text(), kernel_desc(name,56)
```

```python
from common import *
LDS_BYTES=65536
NV=248
V_X=0+88
V_ACC=56
V_WF=24
V_TR=16
V_TRS=20
V_DM=12
V_L16=14; V_T=15; V_T2=11; V_PK=4
S_WS=8; S_W=[12,16,20]; S_XS=24
S_RB=28; S_H=29; S_WV=30; S_SEG=31; S_T0=32; S_T1=33; S_SLOT=34; S_LSLOT=35; S_CNT=36
S_LOFF=37; S_OUT=38; S_HU=39; S_LSRD=40
S_LHU=44; S_LCH=45

def gen_qkv(name="qkv_kernel"):
    a=Asm()
    ws=f"s[{S_WS}:{S_WS+3}]"
    a("s_cmp_ge_u32 s2, 512")
    a("s_cbranch_scc1 Lqkv_end")
    a(f"s_load_dwordx2 s[4:5], s[0:1], {ARG['ws']}")
    a(f"s_load_dwordx2 s[6:7], s[0:1], {ARG['x']}")
    a(f"s_load_dwordx4 s[48:51], s[0:1], {ARG['Wq']}")
    a(f"s_load_dwordx2 s[52:53], s[0:1], {ARG['Wv']}")
    a(f"s_and_b32 s{S_H}, s2, 7")
    a(f"s_lshl_b32 s{S_H}, s{S_H}, 2")
    a(f"s_lshr_b32 s{S_T0}, s2, 3")
    a(f"s_and_b32 s{S_T0}, s{S_T0}, 3")
    a(f"s_add_u32 s{S_H}, s{S_H}, s{S_T0}")
    a(f"s_lshr_b32 s{S_RB}, s2, 5")
    a(f"v_lshrrev_b32 v{V_T}, 6, v0")
    a("v_and_b32 v1, 63, v0")
    a(f"v_readfirstlane_b32 s{S_WV}, v{V_T}")
    a("v_lshrrev_b32 v2, 4, v1")
    a("v_and_b32 v3, 15, v1")
    a(f"v_lshlrev_b32 v{V_L16}, 4, v1")
    a("s_waitcnt lgkmcnt(0)")
    srd(a,S_WS,4,SZ['ws']); srd(a,S_XS,6,SZ['x'])
    srd(a,S_W[0],48,SZ['Wq']); srd(a,S_W[1],50,SZ['Wk']); srd(a,S_W[2],52,SZ['Wv'])
    a(f"s_lshl_b32 s{S_SEG}, s{S_RB}, 2")
    a(f"s_add_u32 s{S_SEG}, s{S_SEG}, s{S_WV}")
    a(f"v_lshrrev_b32 v{V_T}, 3, v1")
    a(f"v_and_b32 v{V_T2}, 3, v{V_T}")
    a("v_and_b32 v4, 7, v1")
    a(f"v_xor_b32 v4, v4, v{V_T2}")
    a(f"v_lshlrev_b32 v{V_T}, 13, v{V_T}")
    a(f"v_lshl_add_u32 v{V_DM}, v4, 4, v{V_T}")
    a("v_xor_b32 v4, 4, v4")
    a(f"v_lshl_add_u32 v{V_DM+1}, v4, 4, v{V_T}")
    a(f"s_mov_b32 s{S_LHU}, 0")
    a(f"s_mov_b32 s{S_LCH}, 0")
    a(f"s_mov_b32 s{S_LSLOT}, 0")
    def issue_chunk():
        a(f"s_cmp_ge_u32 s{S_LHU}, 6")
        a(f"s_cselect_b32 s{S_LHU}, 5, s{S_LHU}")
        a(f"s_lshr_b32 s{S_T0}, s{S_LHU}, 1")
        a(f"s_cmp_eq_u32 s{S_T0}, 1")
        a(f"s_cselect_b64 s[{S_LSRD}:{S_LSRD+1}], s[{S_W[1]}:{S_W[1]+1}], s[{S_W[0]}:{S_W[0]+1}]")
        a(f"s_cmp_eq_u32 s{S_T0}, 2")
        a(f"s_cselect_b64 s[{S_LSRD}:{S_LSRD+1}], s[{S_W[2]}:{S_W[2]+1}], s[{S_LSRD}:{S_LSRD+1}]")
        a(f"s_lshl_b32 s{S_LOFF}, s{S_LCH}, 2")
        a(f"s_add_u32 s{S_LOFF}, s{S_LOFF}, s{S_WV}")
        a(f"s_lshl_b32 s{S_LOFF}, s{S_LOFF}, 18")
        a(f"s_lshl_b32 s{S_T0}, s{S_H}, 8")
        a(f"s_add_u32 s{S_LOFF}, s{S_LOFF}, s{S_T0}")
        a(f"s_and_b32 s{S_T0}, s{S_LHU}, 1")
        a(f"s_lshl_b32 s{S_T0}, s{S_T0}, 7")
        a(f"s_add_u32 s{S_LOFF}, s{S_LOFF}, s{S_T0}")
        a(f"s_lshl_b32 s{S_T1}, s{S_WV}, 12")
        a(f"s_add_u32 s{S_T1}, s{S_T1}, s{S_LSLOT}")
        for i in range(4):
            a(f"s_add_u32 m0, s{S_T1}, {i*1024}")
            a(f"s_add_u32 s{S_T0}, s{S_LOFF}, {i*8*8192}")
            a(f"buffer_load_dwordx4 v{V_DM+(i&1)}, s[{S_LSRD}:{S_LSRD+3}], s{S_T0} offen lds")
        a(f"s_add_u32 s{S_LCH}, s{S_LCH}, 1")
        a(f"s_cmp_eq_u32 s{S_LCH}, 5")
        a(f"s_cselect_b32 s{S_LCH}, 0, s{S_LCH}")
        a(f"s_addc_u32 s{S_LHU}, s{S_LHU}, 0")
        a(f"s_add_u32 s{S_LSLOT}, s{S_LSLOT}, 16384")
        a(f"s_and_b32 s{S_LSLOT}, s{S_LSLOT}, 65535")
    a(f"s_mov_b32 s{S_LSRD+2}, {SZ['Wq']}")
    a(f"s_mov_b32 s{S_LSRD+3}, 0x00020000")
    issue_chunk(); issue_chunk(); issue_chunk()
    a(f"v_mul_u32_u24 v{V_T}, 1280, v3")
    a(f"v_lshl_add_u32 v{V_T}, v2, 4, v{V_T}")
    a(f"s_mul_i32 s{S_T0}, s{S_SEG}, {32*1280}")
    a(f"s_add_u32 s{S_T1}, s{S_T0}, {16*1280}")
    for ks in range(20):
        for tt in range(2):
            r=V_X+(ks*2+tt)*4
            a(f"buffer_load_dwordx4 {vr(r,4)}, v{V_T}, s[{S_XS}:{S_XS+3}], s{S_T0 if tt==0 else S_T1} offen offset:{ks*64}")
    a(f"v_lshrrev_b32 v{V_T}, 2, v3")
    a("v_and_b32 v4, 1, v2")
    a(f"v_lshl_or_b32 v4, v4, 2, v{V_T}")
    a(f"v_lshl_add_u32 v5, v2, 3, v{V_T}")
    a("v_lshlrev_b32 v5, 7, v5")
    a("v_and_b32 v6, 1, v3")
    a("v_lshl_add_u32 v5, v6, 3, v5")
    a("v_bfe_u32 v6, v3, 1, 1")
    for ct in range(4):
        a(f"v_or_b32 v7, {2*ct}, v6")
        a("v_xor_b32 v7, v7, v4")
        a(f"v_lshl_add_u32 v{V_TR+ct}, v7, 4, v5")
    a(f"s_mov_b32 s{S_SLOT}, 0")
    a(f"s_mov_b32 s{S_HU}, 0")
    a(f"s_lshl_b32 s{S_OUT}, s{S_SEG}, 5")
    a(f"s_add_u32 s{S_OUT}, s{S_OUT}, s{S_H}")
    a(f"s_lshl_b32 s{S_OUT}, s{S_OUT}, 13")
    def half_unit(isv, first_label):
        for ch in range(5):
            cnt = 12 if ch<3 else 8
            if ch==0:
                pass
            a(f"s_waitcnt vmcnt({cnt})")
            a("s_barrier")
            issue_chunk()
            for ct in range(4):
                a(f"v_add_u32 v{V_TRS+ct}, s{S_SLOT}, v{V_TR+ct}")
            def rd(ks,buf):
                for ct in range(4):
                    r=V_WF+buf*16+ct*4
                    a(f"ds_read_b64_tr_b16 {vr(r,2)}, v{V_TRS+ct} offset:{(32*ks)*128}")
                    a(f"ds_read_b64_tr_b16 {vr(r+2,2)}, v{V_TRS+ct} offset:{(32*ks+4)*128}")
            rd(0,0)
            for ks in range(4):
                if ks<3:
                    rd(ks+1,(ks+1)&1)
                    a("s_waitcnt lgkmcnt(8)")
                else:
                    a("s_waitcnt lgkmcnt(0)")
                kk=ch*4+ks
                for ct in range(4):
                    for tt in range(2):
                        acc=vr(V_ACC+(ct*2+tt)*4,4); w=vr(V_WF+(ks&1)*16+ct*4,4); x=vr(V_X+(kk*2+tt)*4,4)
                        c="0" if kk==0 else acc
                        if isv: a(f"v_mfma_f32_16x16x32_bf16 {acc}, {x}, {w}, {c}")
                        else:   a(f"v_mfma_f32_16x16x32_bf16 {acc}, {w}, {x}, {c}")
            a(f"s_add_u32 s{S_SLOT}, s{S_SLOT}, 16384")
            a(f"s_and_b32 s{S_SLOT}, s{S_SLOT}, 65535")
        a(f"s_and_b32 s{S_T0}, s{S_HU}, 1")
        if isv:
            a(f"s_lshl_b32 s{S_T0}, s{S_T0}, 12")
            a(f"s_add_u32 s{S_T0}, s{S_T0}, s{S_OUT}")
            a(f"s_add_u32 s{S_T0}, s{S_T0}, {WS_VX}")
        else:
            a(f"s_lshl_b32 s{S_T0}, s{S_T0}, 11")
            a(f"s_add_u32 s{S_T0}, s{S_T0}, s{S_OUT}")
            a(f"s_lshr_b32 s{S_T1}, s{S_HU}, 1")
            a(f"s_lshl_b32 s{S_T1}, s{S_T1}, 24")
            a(f"s_add_u32 s{S_T0}, s{S_T0}, s{S_T1}")
            a(f"s_add_u32 s{S_T1}, s{S_T0}, 4096")
        a("s_nop 4")
        pk=[V_WF,V_WF+4,V_WF+8,V_WF+12]
        for i in range(4):
            if isv: A=V_ACC+(i*2)*4; B=V_ACC+(i*2+1)*4; off=i*1024; so=S_T0
            else:
                p=i>>1; tt=i&1
                A=V_ACC+((2*p)*2+tt)*4; B=V_ACC+((2*p+1)*2+tt)*4; off=p*1024; so=S_T0 if tt==0 else S_T1
            P=pk[i]
            a(f"v_cvt_pk_bf16_f32 v{P}, v{A}, v{A+1}")
            a(f"v_cvt_pk_bf16_f32 v{P+1}, v{A+2}, v{A+3}")
            a(f"v_cvt_pk_bf16_f32 v{P+2}, v{B}, v{B+1}")
            a(f"v_cvt_pk_bf16_f32 v{P+3}, v{B+2}, v{B+3}")
            a(f"buffer_store_dwordx4 {vr(P,4)}, v{V_L16}, {ws}, s{so} offen offset:{off}")
        a(f"s_add_u32 s{S_HU}, s{S_HU}, 1")
    a("s_waitcnt vmcnt(0)")
    a.label("Lqkv_qk")
    half_unit(False,None)
    a(f"s_cmp_lt_u32 s{S_HU}, 4")
    a("s_cbranch_scc1 Lqkv_qk")
    a.label("Lqkv_v")
    half_unit(True,None)
    a(f"s_cmp_lt_u32 s{S_HU}, 6")
    a("s_cbranch_scc1 Lqkv_v")
    a("s_waitcnt vmcnt(0)")
    a.label("Lqkv_end")
    a("s_endpgm")
    return kernel_header(name)+a.text(), kernel_desc(name,NV)
```

```python
from common import *
import math

S_WS=8; S_TA=12; S_TB=16; S_DBG=20
S_X=24; S_C=25; S_H=26; S_J=27; S_W=28; S_S=29
S_OD=30; S_OA1=31; S_OA2=32; S_OC=33
S_RD=34; S_RA1=35; S_RA2=36; S_RC=37
S_T0=38; S_T1=39; S_PC=40; S_SC=41
S_KM=44; S_VM=45; S_KXO=46; S_VXO=47; S_LSL=48; S_LSW=49
S_BD=50; S_BA1=51; S_BA2=52; S_BC=53; S_BCW=54
S_M40=56
L_QK=1024; L_V=5120; L_S3=9216; L_KX=17408; KXS=9216; L_ST=49152
LDS_BYTES=112*1024
V_LANE=1; V_AD=2; V_AA2=3; V_L16=4; V_SA1=5; V_SA2=6; V_SD=7; V_R3=8; V_RV0=9; V_RV1=10; V_T=11; V_T2=12; V_M=13; V_L8=14; V_ADL=15
V_F=16
V_ACC=48
V_W1=64
V_W3=124
V_KX=156
V_VX=188
V_BIAS=192
V_ONES=196
V_SENT=200
V_VM=204
V_P=208
V_E=216
V_ACC2=228
NV=244
POLL_LIMIT=200000
PROF=False
DLY=dict(d=0,a1=0,a2=0,c=0)
def delay(a,k):
    if DLY[k]>0: a(f"s_sleep {DLY[k]}")
S_TS=60; S_TL=62; S_ACC0=64; S_PCA=80
def stamp(a,k):
    if not PROF: return
    a(f"s_memtime s[{S_TS}:{S_TS+1}]")
    a("s_waitcnt lgkmcnt(0)")
    a(f"s_sub_u32 s{S_TS+1}, s{S_TS}, s{S_TL}")
    a(f"s_add_u32 s{S_ACC0+k}, s{S_ACC0+k}, s{S_TS+1}")
    a(f"s_mov_b32 s{S_TL}, s{S_TS}")
def pcount(a,k):
    if not PROF: return
    a(f"s_add_u32 s{S_PCA+k}, s{S_PCA+k}, s{S_PC}")

def poll(a, loads, nregs, base):
    lp=a.newlab("Lpoll"); ld=a.newlab("Lpd")
    a(f"s_mov_b32 s{S_PC}, 0")
    a.label(lp)
    for l in loads: a(l)
    a("s_waitcnt vmcnt(0)")
    regs=list(range(base,base+nregs))
    a(f"v_max3_u32 v{V_T}, v{regs[0]}, v{regs[1]}, v{regs[2]}")
    i=3
    while i<nregs:
        if i+1<nregs:
            a(f"v_max3_u32 v{V_T}, v{V_T}, v{regs[i]}, v{regs[i+1]}"); i+=2
        else:
            a(f"v_max_u32 v{V_T}, v{V_T}, v{regs[i]}"); i+=1
    a(f"v_cmp_eq_u32 vcc, -1, v{V_T}")
    a(f"s_cbranch_vccz {ld}")
    a(f"s_add_u32 s{S_PC}, s{S_PC}, 1")
    a(f"s_cmp_lt_u32 s{S_PC}, {POLL_LIMIT}")
    a(f"s_cbranch_scc1 {lp}")
    a.label(ld)

def gen_rec(name="rec_kernel"):
    a=Asm()
    ws=f"s[{S_WS}:{S_WS+3}]"
    a("s_cmp_ge_u32 s2, 256")
    a("s_cbranch_scc1 Lrec_end")
    a(f"s_load_dwordx2 s[4:5], s[0:1], {ARG['ws']}")
    a(f"s_load_dwordx2 s[6:7], s[0:1], {ARG['dbg']}")
    a(f"v_and_b32 v{V_LANE}, 63, v0")
    a(f"v_lshrrev_b32 v{V_T}, 6, v0")
    a("s_nop 0")
    a(f"v_readfirstlane_b32 s{S_W}, v{V_T}")
    a("s_waitcnt lgkmcnt(0)")
    srd(a,S_WS,4,SZ['ws']); srd(a,S_DBG,6,256)
    a(f"s_cmp_lg_u32 s{S_W}, 0")
    a("s_cbranch_scc1 Lrec_role_wait")
    a(f"s_getreg_b32 s{S_X}, hwreg(HW_REG_XCC_ID)")
    a(f"s_and_b32 s{S_X}, s{S_X}, 7")
    a(f"s_lshl_b32 s{S_T0}, s{S_X}, 2")
    a(f"v_mov_b32 v{V_T}, 1")
    a(f"v_mov_b32 v{V_T2}, 0")
    a("s_mov_b64 exec, 1")
    a(f"buffer_atomic_add v{V_T}, v{V_T2}, s[{S_DBG}:{S_DBG+3}], s{S_T0} offen sc0")
    a("s_waitcnt vmcnt(0)")
    a(f"v_mov_b32 v{V_M}, s{S_X}")
    a(f"ds_write_b32 v{V_T2}, v{V_T}")
    a(f"ds_write_b32 v{V_T2}, v{V_M} offset:4")
    a("s_waitcnt lgkmcnt(0)")
    a("s_mov_b64 exec, -1")
    a.label("Lrec_role_wait")
    a("s_barrier")
    a(f"v_mov_b32 v{V_T2}, 0")
    a(f"ds_read_b64 v[{V_F}:{V_F+1}], v{V_T2}")
    a("s_waitcnt lgkmcnt(0)")
    a(f"v_readfirstlane_b32 s{S_C}, v{V_F}")
    a(f"v_readfirstlane_b32 s{S_X}, v{V_F+1}")
    a("s_nop 3")
    a(f"s_cmp_ge_u32 s{S_C}, 32")
    a("s_cbranch_scc1 Lrec_end")
    a(f"s_lshr_b32 s{S_T0}, s{S_C}, 3")
    a(f"s_lshl_b32 s{S_H}, s{S_X}, 2")
    a(f"s_add_u32 s{S_H}, s{S_H}, s{S_T0}")
    a(f"s_and_b32 s{S_J}, s{S_C}, 7")
    a(f"v_lshlrev_b32 v{V_L16}, 4, v{V_LANE}")
    a(f"v_lshlrev_b32 v{V_L8}, 3, v{V_LANE}")
    for i in range(4): a(f"v_mov_b32 v{V_SENT+i}, -1")
    a(f"s_mov_b32 s{S_M40}, -1")
    a(f"s_mov_b32 s{S_M40+1}, 0xff")
    a(f"s_mul_i32 s{S_BD}, s{S_X}, 10240")
    a(f"s_add_u32 s{S_BD}, s{S_BD}, {RING_D}")
    a(f"s_lshl_b32 s{S_BA1}, s{S_H}, 12")
    a(f"s_add_u32 s{S_BA1}, s{S_BA1}, {RING_A1}")
    a(f"s_mul_i32 s{S_BC}, s{S_C}, 5120")
    a(f"s_add_u32 s{S_BC}, s{S_BC}, {RING_C}")
    a(f"s_mul_i32 s{S_BCW}, s{S_X}, 640")
    a(f"s_add_u32 s{S_BCW}, s{S_BCW}, s{S_BC}")
    a(f"s_lshl_b32 s{S_BA2}, s{S_X}, 13")
    a(f"s_add_u32 s{S_BA2}, s{S_BA2}, {RING_A2}")
    a(f"s_mov_b32 s{S_S}, 0")
    a(f"s_cmp_eq_u32 s{S_W}, 4")
    a("s_cbranch_scc1 Lrec_aux")
    G=V_F+28; N=V_F+29; TR=V_F+30; TMP=V_F+31
    a(f"v_lshrrev_b32 v{G}, 4, v{V_LANE}")
    a(f"v_and_b32 v{N}, 15, v{V_LANE}")
    a(f"v_lshrrev_b32 v{V_T}, 1, v{V_LANE}")
    a(f"v_lshlrev_b32 v{V_T}, 13, v{V_T}")
    a(f"v_and_b32 v{V_T2}, 1, v{V_LANE}")
    a(f"v_lshl_add_u32 v{V_T}, v{V_T2}, 4, v{V_T}")
    a(f"s_mul_i32 s{S_T0}, s{S_W}, {160*8192}")
    a(f"s_lshl_b32 s{S_T1}, s{S_H}, 8")
    a(f"s_add_u32 s{S_T0}, s{S_T0}, s{S_T1}")
    a(f"s_lshl_b32 s{S_T1}, s{S_J}, 5")
    a(f"s_add_u32 s{S_T0}, s{S_T0}, s{S_T1}")
    a(f"s_mul_i32 s{S_LSW}, s{S_W}, 15360")
    a(f"s_add_u32 s{S_LSW}, s{S_LSW}, {L_ST}")
    for mi,mn in enumerate(("Wq","Wk","Wv")):
        a(f"s_load_dwordx2 s[4:5], s[0:1], {ARG[mn]}")
        a("s_waitcnt lgkmcnt(0)")
        srd(a,S_TA,4,SZ[mn])
        for i in range(5):
            a(f"s_add_u32 m0, s{S_LSW}, {mi*5120+i*1024}")
            a(f"s_add_u32 s{S_T1}, s{S_T0}, {i*32*8192}")
            a(f"buffer_load_dwordx4 v{V_T}, s[{S_TA}:{S_TA+3}], s{S_T1} offen lds")
    a(f"s_load_dwordx2 s[4:5], s[0:1], {ARG['Wo']}")
    a(f"v_lshrrev_b32 v{V_T2}, 3, v{V_LANE}")
    a(f"v_mul_u32_u24 v{V_T2}, 1280, v{V_T2}")
    a(f"v_and_b32 v{TMP}, 7, v{V_LANE}")
    a(f"v_lshl_add_u32 v{V_T2}, v{TMP}, 3, v{V_T2}")
    a(f"s_lshl_b32 s{S_T0}, s{S_X}, 2")
    a(f"s_add_u32 s{S_T0}, s{S_T0}, s{S_W}")
    a(f"s_mul_i32 s{S_T0}, s{S_T0}, {128*1280}")
    a(f"s_mul_i32 s{S_T1}, s{S_C}, 40")
    a(f"s_add_u32 s{S_T0}, s{S_T0}, s{S_T1}")
    a("s_waitcnt lgkmcnt(0)")
    srd(a,S_TB,4,SZ['Wo'])
    for i in range(16):
        a(f"s_add_u32 s{S_T1}, s{S_T0}, {i*8*1280}")
        a(f"buffer_load_dwordx2 v[{V_KX+2*i}:{V_KX+2*i+1}], v{V_T2}, s[{S_TB}:{S_TB+3}], s{S_T1} offen")
    a(f"v_lshrrev_b32 v{TR}, 2, v{N}")
    a(f"v_lshl_add_u32 v{TR}, v{G}, 3, v{TR}")
    a(f"v_lshlrev_b32 v{TR}, 5, v{TR}")
    a(f"v_and_b32 v{TMP}, 3, v{N}")
    a(f"v_lshl_add_u32 v{TR}, v{TMP}, 3, v{TR}")
    a(f"v_add_u32 v{TR}, s{S_LSW}, v{TR}")
    a("s_waitcnt vmcnt(16)")
    for mi in range(3):
        for t in range(5):
            r=V_W1+(t*3+mi)*4
            a(f"ds_read_b64_tr_b16 v[{r}:{r+1}], v{TR} offset:{mi*5120+t*1024}")
            a(f"ds_read_b64_tr_b16 v[{r+2}:{r+3}], v{TR} offset:{mi*5120+t*1024+128}")
    a("s_waitcnt vmcnt(0) lgkmcnt(0)")
    a(f"v_add_u32 v{V_T}, s{S_LSW}, v{V_L8}")
    for i in range(16):
        a(f"ds_write_b64 v{V_T}, v[{V_KX+2*i}:{V_KX+2*i+1}] offset:{i*512}")
    a(f"v_lshrrev_b32 v{TR}, 2, v{N}")
    a(f"v_lshl_add_u32 v{TR}, v{G}, 2, v{TR}")
    a(f"v_lshlrev_b32 v{TR}, 6, v{TR}")
    a(f"v_and_b32 v{TMP}, 3, v{N}")
    a(f"v_lshl_add_u32 v{TR}, v{TMP}, 3, v{TR}")
    a(f"v_add_u32 v{TR}, s{S_LSW}, v{TR}")
    a("s_waitcnt lgkmcnt(0)")
    for ks in range(4):
        for tl in range(2):
            r=V_W3+(ks*2+tl)*4
            a(f"ds_read_b64_tr_b16 v[{r}:{r+1}], v{TR} offset:{(32*ks)*64+tl*32}")
            a(f"ds_read_b64_tr_b16 v[{r+2}:{r+3}], v{TR} offset:{(32*ks+16)*64+tl*32}")
    FR=V_F+26; HI=V_F+27
    a(f"v_and_b32 v{FR}, 7, v{N}")
    a(f"v_lshl_add_u32 v{FR}, v{G}, 3, v{FR}")
    a(f"v_lshlrev_b32 v{FR}, 4, v{FR}")
    a(f"v_lshrrev_b32 v{HI}, 3, v{N}")
    a(f"s_mul_i32 s{S_T0}, s{S_W}, 2560")
    a(f"v_lshl_add_u32 v{V_AD}, v{HI}, 9, v{FR}")
    a(f"v_add_u32 v{V_AA2}, 0, v{V_AD}")
    a(f"v_add_u32 v{V_AD}, s{S_T0}, v{V_AD}")
    a(f"v_add_u32 v{V_ADL}, s{S_T0}, v{FR}")
    a(f"v_add_u32 v{V_ADL}, 2048, v{V_ADL}")
    a(f"s_lshl_b32 s{S_T0}, s{S_W}, 11")
    a(f"v_add_u32 v{V_AA2}, s{S_T0}, v{V_AA2}")
    a(f"s_lshr_b32 s{S_T0}, s{S_J}, 1")
    a(f"s_lshl_b32 s{S_T0}, s{S_T0}, 10")
    a(f"s_and_b32 s{S_T1}, s{S_J}, 1")
    a(f"s_lshl_b32 s{S_T1}, s{S_T1}, 3")
    a(f"s_add_u32 s{S_T0}, s{S_T0}, s{S_T1}")
    a(f"v_add_u32 v{V_SA1}, s{S_T0}, v{V_L16}")
    a(f"s_lshr_b32 s{S_T0}, s{S_J}, 1")
    a(f"s_lshl_b32 s{S_T0}, s{S_T0}, 9")
    a(f"s_add_u32 s{S_T0}, s{S_T0}, s{S_T1}")
    a(f"s_and_b32 s{S_T1}, s{S_H}, 3")
    a(f"s_lshl_b32 s{S_T1}, s{S_T1}, 11")
    a(f"s_add_u32 s{S_T0}, s{S_T0}, s{S_T1}")
    a(f"v_add_u32 v{V_SA2}, s{S_T0}, v{FR}")
    Q=V_F+24; N8=V_F+25
    a(f"v_lshrrev_b32 v{Q}, 3, v{V_LANE}")
    a(f"v_and_b32 v{N8}, 7, v{V_LANE}")
    a(f"v_and_b32 v{TMP}, 3, v{Q}")
    a(f"v_lshl_add_u32 v{V_R3}, v{TMP}, 4, v{N8}")
    a(f"v_lshlrev_b32 v{V_R3}, 4, v{V_R3}")
    a(f"v_lshrrev_b32 v{TMP}, 2, v{Q}")
    a(f"v_lshl_add_u32 v{V_R3}, v{TMP}, 10, v{V_R3}")
    a(f"v_add_u32 v{V_R3}, {L_S3}, v{V_R3}")
    a(f"s_mul_i32 s{S_T0}, s{S_C}, 20")
    a(f"v_lshlrev_b32 v{TMP}, 2, v{Q}")
    a(f"v_add_u32 v{TMP}, s{S_T0}, v{TMP}")
    a(f"v_lshrrev_b32 v{V_SD}, 3, v{TMP}")
    a(f"v_lshl_add_u32 v{V_SD}, v{V_SD}, 3, v{N8}")
    a(f"v_lshlrev_b32 v{V_SD}, 4, v{V_SD}")
    a(f"v_and_b32 v{TMP}, 7, v{TMP}")
    a(f"v_lshl_add_u32 v{V_SD}, v{TMP}, 1, v{V_SD}")
    a(f"v_add_u32 v{V_RV1}, {L_V}, v{V_L16}")
    a(f"v_xor_b32 v{V_RV0}, 512, v{V_L16}")
    a(f"v_add_u32 v{V_RV0}, {L_V}, v{V_RV0}")
    a(f"v_mov_b32 v{V_BIAS}, 0xf149f2ca")
    a(f"v_cmp_gt_u32 vcc, 32, v{V_LANE}")
    a("s_nop 1")
    a(f"v_cndmask_b32 v{V_BIAS}, 0, v{V_BIAS}, vcc")
    for i in range(1,4): a(f"v_mov_b32 v{V_BIAS+i}, v{V_BIAS}")
    for i in range(4): a(f"v_mov_b32 v{V_ONES+i}, 0x3f803f80")
    sc=(128**-0.5)*math.log2(math.e)
    import struct
    a(f"s_mov_b32 s{S_SC}, 0x{struct.unpack('<I',struct.pack('<f',sc))[0]:08x}")
    a(f"s_lshl_b32 s{S_KM}, s{S_H}, 12")
    a(f"s_add_u32 s{S_KM}, s{S_KM}, {WS_KM}")
    a(f"s_lshl_b32 s{S_VM}, s{S_H}, 12")
    a(f"s_lshl_b32 s{S_T0}, s{S_J}, 9")
    a(f"s_add_u32 s{S_VM}, s{S_VM}, s{S_T0}")
    a(f"s_add_u32 s{S_VM}, s{S_VM}, {WS_VM}")
    a(f"s_mov_b32 s{S_LSL}, {L_KX}")
    a(f"s_load_dwordx2 s[4:5], s[0:1], {ARG['mem0']}")
    a(f"v_and_b32 v{V_T}, 7, v{N}")
    a(f"v_mul_u32_u24 v{V_T}, 1280, v{V_T}")
    a(f"v_lshl_add_u32 v{V_T}, v{G}, 4, v{V_T}")
    a(f"s_mul_i32 s{S_T0}, s{S_W}, 320")
    a(f"v_add_u32 v{V_T}, s{S_T0}, v{V_T}")
    a(f"v_lshl_add_u32 v{V_T2}, v{HI}, 6, v{V_T}")
    a("s_waitcnt lgkmcnt(0)")
    srd(a,S_TA,4,SZ['mem0'])
    a(f"buffer_load_dwordx4 v[{V_F}:{V_F+3}], v{V_T2}, s[{S_TA}:{S_TA+3}], 0 offen")
    a(f"buffer_load_dwordx4 v[{V_F+4}:{V_F+7}], v{V_T2}, s[{S_TA}:{S_TA+3}], 0 offen offset:128")
    a(f"buffer_load_dwordx4 v[{V_F+8}:{V_F+11}], v{V_T}, s[{S_TA}:{S_TA+3}], 0 offen offset:256")
    a("s_waitcnt vmcnt(0)")
    a("s_barrier")
    if PROF:
        for i in range(20): a(f"s_mov_b32 s{S_ACC0+i}, 0")
        a(f"s_memtime s[{S_TS}:{S_TS+1}]")
        a("s_waitcnt lgkmcnt(0)")
        a(f"s_mov_b32 s{S_TL}, s{S_TS}")
    a("s_branch Lrec_s1")
    a.label("Lrec_loop")
    delay(a,'d')
    poll(a,[f"buffer_load_dwordx4 v[{V_F}:{V_F+3}], v{V_AD}, {ws}, s{S_OD} offen sc1",
            f"buffer_load_dwordx4 v[{V_F+4}:{V_F+7}], v{V_AD}, {ws}, s{S_OD} offen offset:1024 sc1",
            f"buffer_load_dwordx4 v[{V_F+8}:{V_F+11}], v{V_ADL}, {ws}, s{S_OD} offen sc1"],12,V_F)
    pcount(a,0)
    a.label("Lrec_s1")
    stamp(a,0)
    AQ=[V_ACC,V_ACC+4]; AK=[V_ACC+8,V_ACC+12]; AV=[V_ACC2,V_ACC2+4]
    for t in range(5):
        f=V_F+(t>>1)*4; p=t&1
        for mi,A in ((0,AQ),(1,AK)):
            w=V_W1+(t*3+mi)*4
            c = "0" if t<2 else vr(A[p],4)
            a(f"v_mfma_f32_16x16x32_bf16 {vr(A[p],4)}, {vr(w,4)}, {vr(f,4)}, {c}")
    a(f"s_and_b32 s{S_T0}, s{S_S}, 3")
    a(f"s_add_u32 s{S_T1}, s{S_S}, 2")
    a(f"s_and_b32 s{S_T1}, s{S_T1}, 3")
    a(f"s_lshl_b32 s{S_OA1}, s{S_T0}, 17")
    a(f"s_add_u32 s{S_OA1}, s{S_OA1}, s{S_BA1}")
    a(f"s_lshl_b32 s{S_RA1}, s{S_T1}, 17")
    a(f"s_add_u32 s{S_RA1}, s{S_RA1}, s{S_BA1}")
    a(f"s_lshl_b32 s{S_OA2}, s{S_T0}, 16")
    a(f"s_add_u32 s{S_OA2}, s{S_OA2}, s{S_BA2}")
    a(f"s_lshl_b32 s{S_RA2}, s{S_T1}, 16")
    a(f"s_add_u32 s{S_RA2}, s{S_RA2}, s{S_BA2}")
    a(f"s_mul_i32 s{S_OC}, s{S_T0}, {32*5120}")
    a(f"s_mul_i32 s{S_RC}, s{S_T1}, {32*5120}")
    a(f"s_add_u32 s{S_T0}, s{S_S}, 1")
    a(f"s_and_b32 s{S_T0}, s{S_T0}, 3")
    a(f"s_mul_i32 s{S_OD}, s{S_T0}, {8*10240}")
    a(f"s_add_u32 s{S_OD}, s{S_OD}, s{S_BD}")
    a(f"s_add_u32 s{S_T1}, s{S_S}, 3")
    a(f"s_and_b32 s{S_T1}, s{S_T1}, 3")
    a(f"s_mul_i32 s{S_RD}, s{S_T1}, {8*10240}")
    a(f"s_add_u32 s{S_RD}, s{S_RD}, s{S_BD}")
    a(f"s_lshl_b32 s{S_T0}, s{S_W}, 10")
    a(f"v_add_u32 v{V_T2}, s{S_T0}, v{V_L16}")
    T4=V_P
    for r in range(4):
        a(f"v_add_f32_dpp v{T4+r}, v{AQ[1]+r}, v{AQ[0]+r} row_ror:8 row_mask:0xf bank_mask:0x3")
    for r in range(4):
        a(f"v_add_f32_dpp v{T4+r}, v{AK[0]+r}, v{AK[1]+r} row_ror:8 row_mask:0xf bank_mask:0xc")
    a(f"ds_write_b128 v{V_T2}, {vr(T4,4)} offset:{L_QK}")
    a("s_waitcnt lgkmcnt(0)")
    a("s_barrier")
    stamp(a,1)
    a(f"s_cmp_lg_u32 s{S_W}, 0")
    a("s_cbranch_scc1 Lrec_nored1")
    for w in range(4):
        a(f"ds_read_b128 {vr(V_E+0 if w==0 else V_ACC+4*(w-1),4)}, v{V_L16} offset:{L_QK+w*1024}")
    a("s_waitcnt lgkmcnt(2)")
    for r in range(4): a(f"v_add_f32 v{V_E+r}, v{V_E+r}, v{V_ACC+r}")
    a("s_waitcnt lgkmcnt(0)")
    for r in range(4): a(f"v_add_f32 v{V_ACC+4+r}, v{V_ACC+4+r}, v{V_ACC+8+r}")
    for r in range(4): a(f"v_add_f32 v{V_E+r}, v{V_E+r}, v{V_ACC+4+r}")
    a(f"v_cvt_pk_bf16_f32 v{V_E+4}, v{V_E}, v{V_E+1}")
    a(f"v_cvt_pk_bf16_f32 v{V_E+5}, v{V_E+2}, v{V_E+3}")
    a(f"buffer_store_dwordx2 {vr(V_E+4,2)}, v{V_SA1}, {ws}, s{S_OA1} offen")
    a(f"buffer_store_dwordx2 {vr(V_E+4,2)}, v{V_SA1}, {ws}, s{S_KM} offen")
    a(f"buffer_store_dwordx2 {vr(V_SENT,2)}, v{V_SA1}, {ws}, s{S_RA1} offen")
    a.label("Lrec_nored1")
    for t in range(5):
        f=V_F+(t>>1)*4; p=t&1
        w=V_W1+(t*3+2)*4
        c = "0" if t<2 else vr(AV[p],4)
        a(f"v_mfma_f32_16x16x32_bf16 {vr(AV[p],4)}, {vr(f,4)}, {vr(w,4)}, {c}")
    a("s_nop 7")
    a("s_nop 1")
    for r in range(4):
        a(f"v_mov_b32_dpp v{AV[0]+r}, v{AV[1]+r} quad_perm:[0,1,2,3] row_mask:0xc bank_mask:0xf")
    a(f"ds_write_b128 v{V_T2}, {vr(AV[0],4)} offset:{L_V}")
    a("s_waitcnt lgkmcnt(0)")
    a("s_barrier")
    stamp(a,2)
    a(f"s_cmp_lg_u32 s{S_W}, 1")
    a("s_cbranch_scc1 Lrec_nos2")
    for w in range(4):
        a(f"ds_read_b128 {vr(V_F+8*w,4)}, v{V_RV0} offset:{w*1024}")
        a(f"ds_read_b128 {vr(V_F+8*w+4,4)}, v{V_RV1} offset:{w*1024}")
    a(f"v_add_u32 v{V_T2}, s{S_LSL}, v{V_L16}")
    for i in range(8):
        a(f"ds_read_b128 {vr(V_KX+4*i,4)}, v{V_T2} offset:{i*1024}")
    a(f"ds_read_b128 {vr(V_VX,4)}, v{V_T2} offset:8192")
    a("s_waitcnt lgkmcnt(9)")
    for k in (4,2,1):
        for i in range(k):
            for r in range(4):
                a(f"v_add_f32 v{V_F+4*i+r}, v{V_F+4*i+r}, v{V_F+4*(i+k)+r}")
    a(f"v_cvt_pk_bf16_f32 v{V_VM}, v{V_F}, v{V_F+1}")
    a(f"v_cvt_pk_bf16_f32 v{V_VM+1}, v{V_F+2}, v{V_F+3}")
    a(f"v_mov_b32 v{V_T}, 0")
    a("s_nop 1")
    a(f"v_mov_b32_dpp v{V_VM}, v{V_T} quad_perm:[0,1,2,3] row_mask:0x3 bank_mask:0xf")
    a(f"v_mov_b32_dpp v{V_VM+1}, v{V_T} quad_perm:[0,1,2,3] row_mask:0x3 bank_mask:0xf")
    a(f"s_cmp_eq_u32 s{S_S}, 63")
    a("s_cbranch_scc1 Lrec_last")
    delay(a,'a1')
    poll(a,[f"buffer_load_dwordx4 {vr(V_F+4*ks,4)}, v{V_L16}, {ws}, s{S_OA1} offen offset:{ks*1024} sc1" for ks in range(4)],16,V_F)
    pcount(a,1); stamp(a,3)
    a("s_waitcnt lgkmcnt(0)")
    S0=V_ACC; S1=V_ACC+4; S2=V_ACC+8
    for ks in range(4):
        f=vr(V_F+4*ks,4)
        a(f"v_mfma_f32_16x16x32_bf16 {vr(S1,4)}, {vr(V_KX+4*ks,4)}, {f}, {'0' if ks==0 else vr(S1,4)}")
        a(f"v_mfma_f32_16x16x32_bf16 {vr(S2,4)}, {vr(V_KX+16+4*ks,4)}, {f}, {'0' if ks==0 else vr(S2,4)}")
        a(f"v_mfma_f32_16x16x32_bf16 {vr(S0,4)}, {f}, {f}, {vr(V_BIAS,4) if ks==0 else vr(S0,4)}")
    a(f"buffer_store_dwordx2 {vr(V_VM,2)}, v{V_L8}, {ws}, s{S_VM} offen")
    a("s_nop 5")
    a(f"v_max3_f32 v{V_M}, v{S1}, v{S1+1}, v{S1+2}")
    a(f"v_max3_f32 v{V_T}, v{S1+3}, v{S2}, v{S2+1}")
    a(f"v_max3_f32 v{V_M}, v{V_M}, v{S2+2}, v{S2+3}")
    a(f"v_max3_f32 v{V_T}, v{V_T}, v{S0}, v{S0+1}")
    a(f"v_max3_f32 v{V_M}, v{V_M}, v{S0+2}, v{S0+3}")
    a(f"v_max_f32 v{V_M}, v{V_M}, v{V_T}")
    a(f"v_mov_b32 v{V_T}, v{V_M}")
    a("s_nop 1")
    a(f"v_permlane32_swap_b32 v{V_M}, v{V_T}")
    a(f"v_max_f32 v{V_M}, v{V_M}, v{V_T}")
    a(f"v_mov_b32 v{V_T}, v{V_M}")
    a("s_nop 1")
    a(f"v_permlane16_swap_b32 v{V_M}, v{V_T}")
    a(f"v_max_f32 v{V_M}, v{V_M}, v{V_T}")
    a(f"v_mul_f32 v{V_M}, s{S_SC}, v{V_M}")
    order=[S1,S1+1,S1+2,S1+3,S2,S2+1,S2+2,S2+3,S0,S0+1,S0+2,S0+3]
    for i,s in enumerate(order):
        a(f"v_fma_f32 v{V_E+i}, v{s}, s{S_SC}, -v{V_M}")
    for i in range(12):
        a(f"v_exp_f32 v{V_E+i}, v{V_E+i}")
    a("s_nop 0")
    for i in range(6):
        a(f"v_cvt_pk_bf16_f32 v{V_P+i}, v{V_E+2*i}, v{V_E+2*i+1}")
    a("s_nop 1")
    O=V_ACC2; Ls=V_ACC2+4; O2=V_ACC2+8; L2=V_ACC2+12
    a(f"v_mfma_f32_16x16x32_bf16 {vr(Ls,4)}, {vr(V_ONES,4)}, {vr(V_P,4)}, 0")
    a(f"v_mfma_f32_16x16x16_bf16 {vr(L2,4)}, {vr(V_ONES,2)}, {vr(V_P+4,2)}, 0")
    a(f"v_mfma_f32_16x16x32_bf16 {vr(O,4)}, {vr(V_VX,4)}, {vr(V_P,4)}, 0")
    a(f"v_mfma_f32_16x16x16_bf16 {vr(O2,4)}, {vr(V_VM,2)}, {vr(V_P+4,2)}, 0")
    a("s_nop 5")
    a(f"v_add_f32 v{V_T}, v{Ls}, v{L2}")
    a(f"v_rcp_f32 v{V_T}, v{V_T}")
    for r in range(4): a(f"v_add_f32 v{O+r}, v{O+r}, v{O2+r}")
    for r in range(4): a(f"v_mul_f32 v{O+r}, v{O+r}, v{V_T}")
    a(f"v_cvt_pk_bf16_f32 v{V_E}, v{O}, v{O+1}")
    a(f"v_cvt_pk_bf16_f32 v{V_E+1}, v{O+2}, v{O+3}")
    a("s_mov_b32 exec_lo, 0x00ff00ff")
    a("s_mov_b32 exec_hi, 0x00ff00ff")
    a(f"buffer_store_dwordx2 {vr(V_E,2)}, v{V_SA2}, {ws}, s{S_OA2} offen")
    a(f"buffer_store_dwordx2 {vr(V_SENT,2)}, v{V_SA2}, {ws}, s{S_RA2} offen")
    a("s_mov_b64 exec, -1")
    a.label("Lrec_nos2")
    a(f"s_cmp_eq_u32 s{S_S}, 63")
    a("s_cbranch_scc1 Lrec_fin")
    a("s_barrier")
    stamp(a,4)
    delay(a,'a2')
    poll(a,[f"buffer_load_dwordx4 {vr(V_F+4*p,4)}, v{V_AA2}, {ws}, s{S_OA2} offen offset:{p*1024} sc1" for p in range(2)],8,V_F)
    pcount(a,2); stamp(a,5)
    AC=[[V_ACC,V_ACC+4],[V_ACC+8,V_ACC+12]]
    for ks in range(4):
        f=vr(V_F+4*(ks>>1),4); p=ks&1
        for tl in range(2):
            a(f"v_mfma_f32_16x16x32_bf16 {vr(AC[tl][p],4)}, {vr(V_W3+(ks*2+tl)*4,4)}, {f}, {'0' if ks<2 else vr(AC[tl][p],4)}")
    a(f"s_lshl_b32 s{S_T0}, s{S_W}, 11")
    a(f"v_add_u32 v{V_T2}, s{S_T0}, v{V_L16}")
    a("s_nop 5")
    for tl in range(2):
        for r in range(4):
            a(f"v_add_f32_dpp v{V_P+4*tl+r}, v{AC[tl][1]+r}, v{AC[tl][0]+r} row_ror:8 row_mask:0xf bank_mask:0xf")
    a(f"ds_write_b128 v{V_T2}, {vr(V_P,4)} offset:{L_S3}")
    a(f"ds_write_b128 v{V_T2}, {vr(V_P+4,4)} offset:{L_S3+1024}")
    a("s_waitcnt lgkmcnt(0)")
    a("s_barrier")
    stamp(a,6)
    a(f"s_cmp_lg_u32 s{S_W}, 2")
    a("s_cbranch_scc1 Lrec_nored3")
    a(f"s_mov_b64 exec, s[{S_M40}:{S_M40+1}]")
    for w in range(4):
        a(f"ds_read_b128 {vr(V_ACC+4*w,4)}, v{V_R3} offset:{w*2048}")
    a(f"s_add_u32 s{S_T0}, s{S_OC}, s{S_BCW}")
    a(f"s_add_u32 s{S_T1}, s{S_RC}, s{S_BCW}")
    a("s_waitcnt lgkmcnt(2)")
    for r in range(4): a(f"v_add_f32 v{V_ACC+r}, v{V_ACC+r}, v{V_ACC+4+r}")
    a("s_waitcnt lgkmcnt(0)")
    for r in range(4): a(f"v_add_f32 v{V_ACC+8+r}, v{V_ACC+8+r}, v{V_ACC+12+r}")
    for r in range(4): a(f"v_add_f32 v{V_ACC+r}, v{V_ACC+r}, v{V_ACC+8+r}")
    a(f"buffer_store_dwordx4 {vr(V_ACC,4)}, v{V_L16}, {ws}, s{S_T0} offen sc1")
    a(f"buffer_store_dwordx4 {vr(V_SENT,4)}, v{V_L16}, {ws}, s{S_T1} offen sc1")
    a("s_mov_b64 exec, -1")
    a.label("Lrec_nored3")
    a(f"s_cmp_lg_u32 s{S_W}, 3")
    a("s_cbranch_scc1 Lrec_nos4")
    a(f"s_mov_b64 exec, s[{S_M40}:{S_M40+1}]")
    a(f"s_add_u32 s{S_T0}, s{S_OC}, s{S_BC}")
    a(f"s_add_u32 s{S_T1}, s{S_T0}, 2560")
    delay(a,'c')
    poll(a,[f"buffer_load_dwordx4 {vr(V_F+4*i,4)}, v{V_L16}, {ws}, s{S_T0 if i<4 else S_T1} offen offset:{(i&3)*640} sc1" for i in range(8)],32,V_F)
    pcount(a,3); stamp(a,7)
    for k in (4,2,1):
        for i in range(k):
            for r in range(4):
                a(f"v_add_f32 v{V_F+4*i+r}, v{V_F+4*i+r}, v{V_F+4*(i+k)+r}")
    a(f"v_cvt_pk_bf16_f32 v{V_E}, v{V_F}, v{V_F+1}")
    a(f"v_cvt_pk_bf16_f32 v{V_E+1}, v{V_F+2}, v{V_F+3}")
    a(f"buffer_store_dwordx2 {vr(V_E,2)}, v{V_SD}, {ws}, s{S_OD} offen")
    a(f"buffer_store_dwordx2 {vr(V_SENT,2)}, v{V_SD}, {ws}, s{S_RD} offen")
    a("s_mov_b64 exec, -1")
    a.label("Lrec_nos4")
    a(f"s_add_u32 s{S_S}, s{S_S}, 1")
    a(f"s_add_u32 s{S_KM}, s{S_KM}, {32*4096}")
    a(f"s_add_u32 s{S_VM}, s{S_VM}, {32*4096}")
    a(f"s_add_u32 s{S_LSL}, s{S_LSL}, {KXS}")
    a(f"s_cmp_eq_u32 s{S_LSL}, {L_KX+3*KXS}")
    a(f"s_cselect_b32 s{S_LSL}, {L_KX}, s{S_LSL}")
    a("s_barrier")
    stamp(a,8)
    a("s_branch Lrec_loop")
    a.label("Lrec_last")
    a(f"buffer_store_dwordx2 {vr(V_VM,2)}, v{V_L8}, {ws}, s{S_VM} offen")
    a.label("Lrec_fin")
    if PROF:
        a(f"s_lshl_b32 s{S_T0}, s{S_X}, 5")
        a(f"s_add_u32 s{S_T0}, s{S_T0}, s{S_C}")
        a(f"s_lshl_b32 s{S_T0}, s{S_T0}, 2")
        a(f"s_add_u32 s{S_T0}, s{S_T0}, s{S_W}")
        a(f"s_lshl_b32 s{S_T0}, s{S_T0}, 7")
        a(f"s_add_u32 s{S_T0}, s{S_T0}, {WS_KS}")
        a(f"v_mov_b32 v{V_T2}, 0")
        for i in range(20):
            a(f"v_mov_b32 v{V_T}, s{S_ACC0+i}")
            a(f"buffer_store_dword v{V_T}, v{V_T2}, {ws}, s{S_T0} offen offset:{4*i}")
            a("s_nop 1")
    a("s_branch Lrec_end")
    a.label("Lrec_aux")
    a(f"s_lshl_b32 s{S_KXO}, s{S_H}, 13")
    a(f"s_lshl_b32 s{S_T0}, s{S_J}, 10")
    a(f"s_add_u32 s{S_VXO}, s{S_KXO}, s{S_T0}")
    a(f"s_add_u32 s{S_KXO}, s{S_KXO}, {WS_KX}")
    a(f"s_add_u32 s{S_VXO}, s{S_VXO}, {WS_VX}")
    a(f"s_mov_b32 s{S_LSL}, {L_KX}")
    def issue():
        for i in range(8):
            a(f"s_add_u32 m0, s{S_LSL}, {i*1024}")
            a(f"s_add_u32 s{S_T0}, s{S_KXO}, {i*1024}")
            a(f"buffer_load_dwordx4 v{V_L16}, {ws}, s{S_T0} offen lds")
        a(f"s_add_u32 m0, s{S_LSL}, 8192")
        a("s_nop 0")
        a(f"buffer_load_dwordx4 v{V_L16}, {ws}, s{S_VXO} offen lds")
        a(f"s_add_u32 s{S_KXO}, s{S_KXO}, {32*8192}")
        a(f"s_add_u32 s{S_VXO}, s{S_VXO}, {32*8192}")
        a(f"s_add_u32 s{S_LSL}, s{S_LSL}, {KXS}")
        a(f"s_cmp_eq_u32 s{S_LSL}, {L_KX+3*KXS}")
        a(f"s_cselect_b32 s{S_LSL}, {L_KX}, s{S_LSL}")
    issue(); issue()
    a("s_waitcnt vmcnt(9)")
    a("s_barrier")
    a.label("Lrec_auxloop")
    a(f"s_cmp_ge_u32 s{S_S}, 61")
    a("s_cbranch_scc1 Lrec_auxskip")
    issue()
    a("s_waitcnt vmcnt(9)")
    a("s_branch Lrec_auxb")
    a.label("Lrec_auxskip")
    a("s_waitcnt vmcnt(0)")
    a.label("Lrec_auxb")
    a("s_barrier")
    a("s_barrier")
    a(f"s_cmp_eq_u32 s{S_S}, 63")
    a("s_cbranch_scc1 Lrec_end")
    a("s_barrier")
    a("s_barrier")
    a(f"s_add_u32 s{S_S}, s{S_S}, 1")
    a("s_barrier")
    a("s_branch Lrec_auxloop")
    a.label("Lrec_end")
    a("s_endpgm")
    return kernel_header(name)+a.text(), kernel_desc(name,NV)

def gen_init(name="init_kernel"):
    a=Asm()
    a(f"s_load_dwordx2 s[4:5], s[0:1], {ARG['ws']}")
    a("s_lshl_b32 s3, s2, 12")
    a("v_lshlrev_b32 v1, 4, v0")
    a("v_add_u32 v1, s3, v1")
    for i in range(4): a(f"v_mov_b32 v{4+i}, -1")
    a("s_waitcnt lgkmcnt(0)")
    srd(a,8,4,RING_END)
    a(f"s_mov_b32 s12, {WS_RING}")
    a(f"s_cmp_ge_u32 s2, {(RING_BYTES+4095)//4096}")
    a("s_cbranch_scc1 Linit_end")
    a("buffer_store_dwordx4 v[4:7], v1, s[8:11], s12 offen")
    a.label("Linit_end")
    a("s_endpgm")
    return kernel_header(name)+a.text(), kernel_desc(name,8)
```

```python
from common import *
import math, struct

S_WS=8; S_TA=12; S_TB=16; S_DBG=20
S_X=24; S_C=25; S_H=26; S_J=27; S_W=28; S_S=29
S_OD=30; S_OA1=31; S_OA2=32; S_OC=33
S_RD=34; S_RA1=35; S_RA2=36
S_T0=38; S_T1=39; S_PC=40; S_SC=41
S_KM=44; S_VM=45; S_KXO=46; S_VXO=47; S_LSL=48; S_LSW=49
S_BD=50; S_BA1=51; S_BA2=52; S_TGT=53
S_M40=56
L_FV=16; L_FVM=20
L_VM=512; L_QK=1024; L_V=5120; L_S3=9216; L_KX=17408; KXS=9216; L_ST=49152
LDS_BYTES=112*1024
NTHREADS=448
V_LANE=1; V_AD=2; V_AA2=3; V_L16=4; V_SA1=5; V_SA2=6; V_SD=7; V_R3=8; V_RV0=9; V_RV1=10; V_T=11; V_T2=12; V_M=13; V_L8=14; V_ADL=15
V_F=16; V_ACC=48; V_W1=64; V_W3=124; V_KX=156; V_VX=188; V_BIAS=192; V_ONES=196; V_SENT=200; V_VM=204; V_ZERO=206; V_ONE=207
V_P=208; V_E=216; V_ACC2=228; V_WQ=244; V_W3A=245
NV=246
POLL_LIMIT=200000
PROF=False
DLY=dict(d=0,a1=0,a2=0,c=0,aux=0)
def delay(a,k):
    if DLY[k]>0: a(f"s_sleep {DLY[k]}")
S_TS=60; S_TL=62; S_TRS=63; S_ACC0=64; S_PCA=80
TRACE_STEP=None
def stamp(a,k):
    if not PROF: return
    if TRACE_STEP is not None:
        l=a.newlab("Lst")
        a(f"s_cmp_lg_u32 s{S_S}, {TRACE_STEP if k!=8 else TRACE_STEP+1}") if False else a(f"s_cmp_lg_u32 s{S_TRS}, {TRACE_STEP}")
        a(f"s_cbranch_scc1 {l}")
        a(f"s_memrealtime s[{S_TS}:{S_TS+1}]")
        a("s_waitcnt lgkmcnt(0)")
        a(f"s_mov_b32 s{S_ACC0+k}, s{S_TS}")
        a.label(l)
        if k==8: a(f"s_add_u32 s{S_TRS}, s{S_TRS}, 1")
        return
    a(f"s_memtime s[{S_TS}:{S_TS+1}]")
    a("s_waitcnt lgkmcnt(0)")
    a(f"s_sub_u32 s{S_TS+1}, s{S_TS}, s{S_TL}")
    a(f"s_add_u32 s{S_ACC0+k}, s{S_ACC0+k}, s{S_TS+1}")
    a(f"s_mov_b32 s{S_TL}, s{S_TS}")
def pcount(a,k):
    if not PROF: return
    a(f"s_add_u32 s{S_PCA+k}, s{S_PCA+k}, s{S_PC}")
def prof_init(a):
    if not PROF: return
    for i in range(20): a(f"s_mov_b32 s{S_ACC0+i}, 0")
    a(f"s_mov_b32 s{S_TRS}, 0")
    a(f"s_memtime s[{S_TS}:{S_TS+1}]")
    a("s_waitcnt lgkmcnt(0)")
    a(f"s_mov_b32 s{S_TL}, s{S_TS}")

S_MK=84
def poll(a, loads, nregs, base, e0="-1"):
    lc=a.newlab("Lpchk"); ld=a.newlab("Lpd")
    n=len(loads)
    a(f"s_mov_b32 s{S_PC}, 0")
    for l in loads: a(l)
    a.label(lc)
    for i in range(n):
        r=base+4*i
        a(f"s_waitcnt vmcnt({n-1-i})") if False else None
    a("s_waitcnt vmcnt(0)")
    for i in range(n):
        r=base+4*i
        t=V_T if i%2==0 else V_M
        a(f"v_max3_u32 v{t}, v{r}, v{r+1}, v{r+2}")
        a(f"v_max_u32 v{t}, v{t}, v{r+3}")
        a(f"v_cmp_eq_u32 s[{S_MK+2*i}:{S_MK+2*i+1}], -1, v{t}")
    a(f"s_or_b64 vcc, s[{S_MK}:{S_MK+1}], s[{S_MK+2}:{S_MK+3}]")
    for i in range(2,n):
        a(f"s_or_b64 vcc, vcc, s[{S_MK+2*i}:{S_MK+2*i+1}]")
    a(f"s_cbranch_scc0 {ld}")
    for i in range(n):
        sk=a.newlab("Lpsk")
        a(f"s_mov_b64 exec, s[{S_MK+2*i}:{S_MK+2*i+1}]")
        a(f"s_cbranch_execz {sk}")
        a(loads[i])
        a.label(sk)
    a(f"s_mov_b64 exec, {e0}")
    a(f"s_add_u32 s{S_PC}, s{S_PC}, 1")
    a(f"s_cmp_lt_u32 s{S_PC}, {POLL_LIMIT}")
    a(f"s_cbranch_scc1 {lc}")
    a("s_waitcnt vmcnt(0)")
    a.label(ld)

def ldsspin(a, off, tgt):
    lp=a.newlab("Lspin")
    a.label(lp)
    a(f"ds_read_b32 v{V_T}, v{V_ZERO} offset:{off}")
    a("s_waitcnt lgkmcnt(0)")
    a(f"v_readfirstlane_b32 s{S_T0}, v{V_T}")
    a("s_nop 0")
    a(f"s_cmp_ge_u32 s{S_T0}, s{tgt}")
    a(f"s_cbranch_scc0 {lp}")

def ring_offsets(a):
    a(f"s_and_b32 s{S_T0}, s{S_S}, 3")
    a(f"s_add_u32 s{S_T1}, s{S_S}, 2")
    a(f"s_and_b32 s{S_T1}, s{S_T1}, 3")
    a(f"s_lshl_b32 s{S_OA1}, s{S_T0}, 17")
    a(f"s_add_u32 s{S_OA1}, s{S_OA1}, s{S_BA1}")
    a(f"s_lshl_b32 s{S_RA1}, s{S_T1}, 17")
    a(f"s_add_u32 s{S_RA1}, s{S_RA1}, s{S_BA1}")
    a(f"s_lshl_b32 s{S_OA2}, s{S_T0}, 16")
    a(f"s_add_u32 s{S_OA2}, s{S_OA2}, s{S_BA2}")
    a(f"s_lshl_b32 s{S_RA2}, s{S_T1}, 16")
    a(f"s_add_u32 s{S_RA2}, s{S_RA2}, s{S_BA2}")
    a(f"s_add_u32 s{S_T0}, s{S_S}, 1")
    a(f"s_and_b32 s{S_T0}, s{S_T0}, 3")
    a(f"s_mul_i32 s{S_OD}, s{S_T0}, {8*10240}")
    a(f"s_add_u32 s{S_OD}, s{S_OD}, s{S_BD}")
    a(f"s_add_u32 s{S_T1}, s{S_S}, 3")
    a(f"s_and_b32 s{S_T1}, s{S_T1}, 3")
    a(f"s_mul_i32 s{S_RD}, s{S_T1}, {8*10240}")
    a(f"s_add_u32 s{S_RD}, s{S_RD}, s{S_BD}")

def advance(a):
    a(f"s_add_u32 s{S_S}, s{S_S}, 1")
    a(f"s_add_u32 s{S_KM}, s{S_KM}, {32*4096}")
    a(f"s_add_u32 s{S_VM}, s{S_VM}, {32*4096}")
    a(f"s_add_u32 s{S_OC}, s{S_OC}, {32*5120}")
    a(f"s_add_u32 s{S_LSL}, s{S_LSL}, {KXS}")
    a(f"s_cmp_eq_u32 s{S_LSL}, {L_KX+3*KXS}")
    a(f"s_cselect_b32 s{S_LSL}, {L_KX}, s{S_LSL}")

def gen_rec(name="rec_kernel"):
    a=Asm()
    ws=f"s[{S_WS}:{S_WS+3}]"
    a("s_cmp_ge_u32 s2, 256")
    a("s_cbranch_scc1 Lrec_end")
    a(f"s_load_dwordx2 s[4:5], s[0:1], {ARG['ws']}")
    a(f"s_load_dwordx2 s[6:7], s[0:1], {ARG['dbg']}")
    a(f"v_and_b32 v{V_LANE}, 63, v0")
    a(f"v_lshrrev_b32 v{V_T}, 6, v0")
    a(f"v_mov_b32 v{V_ZERO}, 0")
    a(f"v_mov_b32 v{V_ONE}, 1")
    a(f"v_readfirstlane_b32 s{S_W}, v{V_T}")
    a("s_waitcnt lgkmcnt(0)")
    srd(a,S_WS,4,SZ['ws']); srd(a,S_DBG,6,256)
    a(f"s_cmp_lg_u32 s{S_W}, 0")
    a("s_cbranch_scc1 Lrec_role_wait")
    a(f"s_getreg_b32 s{S_X}, hwreg(HW_REG_XCC_ID)")
    a(f"s_and_b32 s{S_X}, s{S_X}, 7")
    a(f"s_lshl_b32 s{S_T0}, s{S_X}, 2")
    a(f"v_mov_b32 v{V_T}, 1")
    a("s_mov_b64 exec, 1")
    a(f"buffer_atomic_add v{V_T}, v{V_ZERO}, s[{S_DBG}:{S_DBG+3}], s{S_T0} offen sc0")
    a("s_waitcnt vmcnt(0)")
    a(f"v_mov_b32 v{V_M}, s{S_X}")
    a(f"ds_write_b32 v{V_ZERO}, v{V_T}")
    a(f"ds_write_b32 v{V_ZERO}, v{V_M} offset:4")
    a(f"ds_write_b32 v{V_ZERO}, v{V_ZERO} offset:{L_FV}")
    a(f"ds_write_b32 v{V_ZERO}, v{V_ZERO} offset:{L_FVM}")
    a("s_waitcnt lgkmcnt(0)")
    a("s_mov_b64 exec, -1")
    a.label("Lrec_role_wait")
    a("s_barrier")
    a(f"ds_read_b64 v[{V_F}:{V_F+1}], v{V_ZERO}")
    a("s_waitcnt lgkmcnt(0)")
    a(f"v_readfirstlane_b32 s{S_C}, v{V_F}")
    a(f"v_readfirstlane_b32 s{S_X}, v{V_F+1}")
    a("s_nop 3")
    a(f"s_cmp_ge_u32 s{S_C}, 32")
    a("s_cbranch_scc1 Lrec_end")
    a(f"s_lshr_b32 s{S_T0}, s{S_C}, 3")
    a(f"s_lshl_b32 s{S_H}, s{S_X}, 2")
    a(f"s_add_u32 s{S_H}, s{S_H}, s{S_T0}")
    a(f"s_and_b32 s{S_J}, s{S_C}, 7")
    a(f"v_lshlrev_b32 v{V_L16}, 4, v{V_LANE}")
    a(f"v_lshlrev_b32 v{V_L8}, 3, v{V_LANE}")
    for i in range(4): a(f"v_mov_b32 v{V_SENT+i}, -1")
    a(f"s_mov_b32 s{S_M40}, -1")
    a(f"s_mov_b32 s{S_M40+1}, 0xff")
    a(f"s_mul_i32 s{S_BD}, s{S_X}, 10240")
    a(f"s_add_u32 s{S_BD}, s{S_BD}, {RING_D}")
    a(f"s_lshl_b32 s{S_BA1}, s{S_H}, 12")
    a(f"s_add_u32 s{S_BA1}, s{S_BA1}, {RING_A1}")
    a(f"s_mul_i32 s{S_OC}, s{S_C}, 5120")
    a(f"s_add_u32 s{S_OC}, s{S_OC}, {RING_C}")
    a(f"s_lshl_b32 s{S_BA2}, s{S_X}, 13")
    a(f"s_add_u32 s{S_BA2}, s{S_BA2}, {RING_A2}")
    a(f"s_mov_b32 s{S_S}, 0")
    a(f"s_lshl_b32 s{S_KM}, s{S_H}, 12")
    a(f"s_add_u32 s{S_KM}, s{S_KM}, {WS_KM}")
    a(f"s_lshl_b32 s{S_VM}, s{S_H}, 12")
    a(f"s_lshl_b32 s{S_T0}, s{S_J}, 9")
    a(f"s_add_u32 s{S_VM}, s{S_VM}, s{S_T0}")
    a(f"s_add_u32 s{S_VM}, s{S_VM}, {WS_VM}")
    a(f"s_mov_b32 s{S_LSL}, {L_KX}")
    G=V_F+28; N=V_F+29; TR=V_F+30; TMP=V_F+31; FR=V_F+26; HI=V_F+27; Q=V_F+24; N8=V_F+25
    a(f"v_lshrrev_b32 v{G}, 4, v{V_LANE}")
    a(f"v_and_b32 v{N}, 15, v{V_LANE}")
    a(f"v_and_b32 v{FR}, 7, v{N}")
    a(f"v_lshl_add_u32 v{FR}, v{G}, 3, v{FR}")
    a(f"v_lshlrev_b32 v{FR}, 4, v{FR}")
    a(f"v_lshrrev_b32 v{HI}, 3, v{N}")
    a(f"s_mul_i32 s{S_T0}, s{S_W}, 2560")
    a(f"v_lshl_add_u32 v{V_AD}, v{HI}, 9, v{FR}")
    a(f"v_add_u32 v{V_AA2}, 0, v{V_AD}")
    a(f"v_add_u32 v{V_AD}, s{S_T0}, v{V_AD}")
    a(f"v_add_u32 v{V_ADL}, s{S_T0}, v{FR}")
    a(f"v_add_u32 v{V_ADL}, 2048, v{V_ADL}")
    a(f"s_lshl_b32 s{S_T0}, s{S_W}, 11")
    a(f"v_add_u32 v{V_AA2}, s{S_T0}, v{V_AA2}")
    a(f"v_add_u32 v{V_W3A}, s{S_T0}, v{V_L16}")
    a(f"s_lshl_b32 s{S_T0}, s{S_W}, 10")
    a(f"v_add_u32 v{V_WQ}, s{S_T0}, v{V_L16}")
    a(f"s_lshr_b32 s{S_T0}, s{S_J}, 1")
    a(f"s_lshl_b32 s{S_T0}, s{S_T0}, 10")
    a(f"s_and_b32 s{S_T1}, s{S_J}, 1")
    a(f"s_lshl_b32 s{S_T1}, s{S_T1}, 3")
    a(f"s_add_u32 s{S_T0}, s{S_T0}, s{S_T1}")
    a(f"v_add_u32 v{V_SA1}, s{S_T0}, v{V_L16}")
    a(f"s_lshr_b32 s{S_T0}, s{S_J}, 1")
    a(f"s_lshl_b32 s{S_T0}, s{S_T0}, 9")
    a(f"s_add_u32 s{S_T0}, s{S_T0}, s{S_T1}")
    a(f"s_and_b32 s{S_T1}, s{S_H}, 3")
    a(f"s_lshl_b32 s{S_T1}, s{S_T1}, 11")
    a(f"s_add_u32 s{S_T0}, s{S_T0}, s{S_T1}")
    a(f"v_add_u32 v{V_SA2}, s{S_T0}, v{FR}")
    a(f"v_lshrrev_b32 v{Q}, 3, v{V_LANE}")
    a(f"v_and_b32 v{N8}, 7, v{V_LANE}")
    a(f"v_and_b32 v{TMP}, 3, v{Q}")
    a(f"v_lshl_add_u32 v{V_R3}, v{TMP}, 4, v{N8}")
    a(f"v_lshlrev_b32 v{V_R3}, 4, v{V_R3}")
    a(f"v_lshrrev_b32 v{TMP}, 2, v{Q}")
    a(f"v_lshl_add_u32 v{V_R3}, v{TMP}, 10, v{V_R3}")
    a(f"v_add_u32 v{V_R3}, {L_S3}, v{V_R3}")
    a(f"s_mul_i32 s{S_T0}, s{S_C}, 20")
    a(f"v_lshlrev_b32 v{TMP}, 2, v{Q}")
    a(f"v_add_u32 v{TMP}, s{S_T0}, v{TMP}")
    a(f"v_lshrrev_b32 v{V_SD}, 3, v{TMP}")
    a(f"v_lshl_add_u32 v{V_SD}, v{V_SD}, 3, v{N8}")
    a(f"v_lshlrev_b32 v{V_SD}, 4, v{V_SD}")
    a(f"v_and_b32 v{TMP}, 7, v{TMP}")
    a(f"v_lshl_add_u32 v{V_SD}, v{TMP}, 1, v{V_SD}")
    a(f"v_add_u32 v{V_RV1}, {L_V}, v{V_L16}")
    a(f"v_xor_b32 v{V_RV0}, 512, v{V_L16}")
    a(f"v_add_u32 v{V_RV0}, {L_V}, v{V_RV0}")
    a(f"v_mov_b32 v{V_BIAS}, 0xf149f2ca")
    a(f"v_cmp_gt_u32 vcc, 32, v{V_LANE}")
    a("s_nop 1")
    a(f"v_cndmask_b32 v{V_BIAS}, 0, v{V_BIAS}, vcc")
    for i in range(1,4): a(f"v_mov_b32 v{V_BIAS+i}, v{V_BIAS}")
    for i in range(4): a(f"v_mov_b32 v{V_ONES+i}, 0x3f803f80")
    sc=(128**-0.5)*math.log2(math.e)
    a(f"s_mov_b32 s{S_SC}, 0x{struct.unpack('<I',struct.pack('<f',sc))[0]:08x}")
    a(f"s_cmp_eq_u32 s{S_W}, 4")
    a("s_cbranch_scc1 Lrec_aux")
    a(f"s_cmp_eq_u32 s{S_W}, 5")
    a("s_cbranch_scc1 Lrec_w5")
    a(f"s_cmp_eq_u32 s{S_W}, 6")
    a("s_cbranch_scc1 Lrec_w6")
    a(f"v_lshrrev_b32 v{V_T}, 1, v{V_LANE}")
    a(f"v_lshlrev_b32 v{V_T}, 13, v{V_T}")
    a(f"v_and_b32 v{V_T2}, 1, v{V_LANE}")
    a(f"v_lshl_add_u32 v{V_T}, v{V_T2}, 4, v{V_T}")
    a(f"s_mul_i32 s{S_T0}, s{S_W}, {160*8192}")
    a(f"s_lshl_b32 s{S_T1}, s{S_H}, 8")
    a(f"s_add_u32 s{S_T0}, s{S_T0}, s{S_T1}")
    a(f"s_lshl_b32 s{S_T1}, s{S_J}, 5")
    a(f"s_add_u32 s{S_T0}, s{S_T0}, s{S_T1}")
    a(f"s_mul_i32 s{S_LSW}, s{S_W}, 15360")
    a(f"s_add_u32 s{S_LSW}, s{S_LSW}, {L_ST}")
    for mi,mn in enumerate(("Wq","Wk","Wv")):
        a(f"s_load_dwordx2 s[4:5], s[0:1], {ARG[mn]}")
        a("s_waitcnt lgkmcnt(0)")
        srd(a,S_TA,4,SZ[mn])
        for i in range(5):
            a(f"s_add_u32 m0, s{S_LSW}, {mi*5120+i*1024}")
            a(f"s_add_u32 s{S_T1}, s{S_T0}, {i*32*8192}")
            a(f"buffer_load_dwordx4 v{V_T}, s[{S_TA}:{S_TA+3}], s{S_T1} offen lds")
    a(f"s_load_dwordx2 s[4:5], s[0:1], {ARG['Wo']}")
    a(f"v_lshrrev_b32 v{V_T2}, 3, v{V_LANE}")
    a(f"v_mul_u32_u24 v{V_T2}, 1280, v{V_T2}")
    a(f"v_and_b32 v{TMP}, 7, v{V_LANE}")
    a(f"v_lshl_add_u32 v{V_T2}, v{TMP}, 3, v{V_T2}")
    a(f"s_lshl_b32 s{S_T0}, s{S_X}, 2")
    a(f"s_add_u32 s{S_T0}, s{S_T0}, s{S_W}")
    a(f"s_mul_i32 s{S_T0}, s{S_T0}, {128*1280}")
    a(f"s_mul_i32 s{S_T1}, s{S_C}, 40")
    a(f"s_add_u32 s{S_T0}, s{S_T0}, s{S_T1}")
    a("s_waitcnt lgkmcnt(0)")
    srd(a,S_TB,4,SZ['Wo'])
    for i in range(16):
        a(f"s_add_u32 s{S_T1}, s{S_T0}, {i*8*1280}")
        a(f"buffer_load_dwordx2 v[{V_KX+2*i}:{V_KX+2*i+1}], v{V_T2}, s[{S_TB}:{S_TB+3}], s{S_T1} offen")
    a(f"v_lshrrev_b32 v{TR}, 2, v{N}")
    a(f"v_lshl_add_u32 v{TR}, v{G}, 3, v{TR}")
    a(f"v_lshlrev_b32 v{TR}, 5, v{TR}")
    a(f"v_and_b32 v{TMP}, 3, v{N}")
    a(f"v_lshl_add_u32 v{TR}, v{TMP}, 3, v{TR}")
    a(f"v_add_u32 v{TR}, s{S_LSW}, v{TR}")
    a("s_waitcnt vmcnt(16)")
    for mi in range(3):
        for t in range(5):
            r=V_W1+(t*3+mi)*4
            a(f"ds_read_b64_tr_b16 v[{r}:{r+1}], v{TR} offset:{mi*5120+t*1024}")
            a(f"ds_read_b64_tr_b16 v[{r+2}:{r+3}], v{TR} offset:{mi*5120+t*1024+128}")
    a("s_waitcnt vmcnt(0) lgkmcnt(0)")
    a(f"v_add_u32 v{V_T}, s{S_LSW}, v{V_L8}")
    for i in range(16):
        a(f"ds_write_b64 v{V_T}, v[{V_KX+2*i}:{V_KX+2*i+1}] offset:{i*512}")
    a(f"v_lshrrev_b32 v{TR}, 2, v{N}")
    a(f"v_lshl_add_u32 v{TR}, v{G}, 2, v{TR}")
    a(f"v_lshlrev_b32 v{TR}, 6, v{TR}")
    a(f"v_and_b32 v{TMP}, 3, v{N}")
    a(f"v_lshl_add_u32 v{TR}, v{TMP}, 3, v{TR}")
    a(f"v_add_u32 v{TR}, s{S_LSW}, v{TR}")
    a("s_waitcnt lgkmcnt(0)")
    for ks in range(4):
        for tl in range(2):
            r=V_W3+(ks*2+tl)*4
            a(f"ds_read_b64_tr_b16 v[{r}:{r+1}], v{TR} offset:{(32*ks)*64+tl*32}")
            a(f"ds_read_b64_tr_b16 v[{r+2}:{r+3}], v{TR} offset:{(32*ks+16)*64+tl*32}")
    a(f"s_load_dwordx2 s[4:5], s[0:1], {ARG['mem0']}")
    a(f"v_and_b32 v{V_T}, 7, v{N}")
    a(f"v_mul_u32_u24 v{V_T}, 1280, v{V_T}")
    a(f"v_lshl_add_u32 v{V_T}, v{G}, 4, v{V_T}")
    a(f"s_mul_i32 s{S_T0}, s{S_W}, 320")
    a(f"v_add_u32 v{V_T}, s{S_T0}, v{V_T}")
    a(f"v_lshl_add_u32 v{V_T2}, v{HI}, 6, v{V_T}")
    a("s_waitcnt lgkmcnt(0)")
    srd(a,S_TA,4,SZ['mem0'])
    a(f"buffer_load_dwordx4 v[{V_F}:{V_F+3}], v{V_T2}, s[{S_TA}:{S_TA+3}], 0 offen")
    a(f"buffer_load_dwordx4 v[{V_F+4}:{V_F+7}], v{V_T2}, s[{S_TA}:{S_TA+3}], 0 offen offset:128")
    a(f"buffer_load_dwordx4 v[{V_F+8}:{V_F+11}], v{V_T}, s[{S_TA}:{S_TA+3}], 0 offen offset:256")
    a(f"s_mul_i32 s{S_T0}, s{S_X}, 640")
    a(f"s_add_u32 s{S_OC}, s{S_OC}, s{S_T0}")
    a("s_waitcnt vmcnt(0)")
    a("s_barrier")
    prof_init(a)
    a("s_branch Lrec_s1")
    a.label("Lrec_loop")
    delay(a,'d')
    poll(a,[f"buffer_load_dwordx4 v[{V_F}:{V_F+3}], v{V_AD}, {ws}, s{S_OD} offen sc1",
            f"buffer_load_dwordx4 v[{V_F+4}:{V_F+7}], v{V_AD}, {ws}, s{S_OD} offen offset:1024 sc1",
            f"buffer_load_dwordx4 v[{V_F+8}:{V_F+11}], v{V_ADL}, {ws}, s{S_OD} offen sc1"],12,V_F)
    pcount(a,0)
    a.label("Lrec_s1")
    stamp(a,0)
    AQ=[V_ACC,V_ACC+4]; AK=[V_ACC+8,V_ACC+12]; AV=[V_ACC2,V_ACC2+4]
    for t in range(5):
        f=V_F+(t>>1)*4; p=t&1
        for mi,A in ((0,AQ),(1,AK)):
            w=V_W1+(t*3+mi)*4
            c = "0" if t<2 else vr(A[p],4)
            a(f"v_mfma_f32_16x16x32_bf16 {vr(A[p],4)}, {vr(w,4)}, {vr(f,4)}, {c}")
    ring_offsets(a)
    T4=V_P
    for r in range(4):
        a(f"v_add_f32_dpp v{T4+r}, v{AQ[1]+r}, v{AQ[0]+r} row_ror:8 row_mask:0xf bank_mask:0x3")
    for r in range(4):
        a(f"v_add_f32_dpp v{T4+r}, v{AK[0]+r}, v{AK[1]+r} row_ror:8 row_mask:0xf bank_mask:0xc")
    a(f"ds_write_b128 v{V_WQ}, {vr(T4,4)} offset:{L_QK}")
    a("s_waitcnt lgkmcnt(0)")
    a("s_barrier")
    stamp(a,1)
    a(f"s_cmp_lg_u32 s{S_W}, 0")
    a("s_cbranch_scc1 Lrec_nored1")
    for w in range(4):
        a(f"ds_read_b128 {vr(V_E+0 if w==0 else V_ACC+4*(w-1),4)}, v{V_L16} offset:{L_QK+w*1024}")
    a("s_waitcnt lgkmcnt(2)")
    for r in range(4): a(f"v_add_f32 v{V_E+r}, v{V_E+r}, v{V_ACC+r}")
    a("s_waitcnt lgkmcnt(0)")
    for r in range(4): a(f"v_add_f32 v{V_ACC+4+r}, v{V_ACC+4+r}, v{V_ACC+8+r}")
    for r in range(4): a(f"v_add_f32 v{V_E+r}, v{V_E+r}, v{V_ACC+4+r}")
    a(f"v_cvt_pk_bf16_f32 v{V_E+4}, v{V_E}, v{V_E+1}")
    a(f"v_cvt_pk_bf16_f32 v{V_E+5}, v{V_E+2}, v{V_E+3}")
    a(f"buffer_store_dwordx2 {vr(V_E+4,2)}, v{V_SA1}, {ws}, s{S_OA1} offen")
    a(f"buffer_store_dwordx2 {vr(V_E+4,2)}, v{V_SA1}, {ws}, s{S_KM} offen")
    a(f"buffer_store_dwordx2 {vr(V_SENT,2)}, v{V_SA1}, {ws}, s{S_RA1} offen")
    stamp(a,2)
    a.label("Lrec_nored1")
    for t in range(5):
        f=V_F+(t>>1)*4; p=t&1
        w=V_W1+(t*3+2)*4
        c = "0" if t<2 else vr(AV[p],4)
        a(f"v_mfma_f32_16x16x32_bf16 {vr(AV[p],4)}, {vr(f,4)}, {vr(w,4)}, {c}")
    a("s_nop 7")
    a("s_nop 1")
    for r in range(4):
        a(f"v_mov_b32_dpp v{AV[0]+r}, v{AV[1]+r} quad_perm:[0,1,2,3] row_mask:0xc bank_mask:0xf")
    a(f"ds_write_b128 v{V_WQ}, {vr(AV[0],4)} offset:{L_V}")
    a("s_waitcnt lgkmcnt(0)")
    a("s_mov_b64 exec, 1")
    a(f"ds_add_u32 v{V_ZERO}, v{V_ONE} offset:{L_FV}")
    a("s_mov_b64 exec, -1")
    a(f"s_cmp_eq_u32 s{S_S}, 63")
    a("s_cbranch_scc1 Lrec_fin")
    a("s_barrier")
    stamp(a,4)
    delay(a,'a2')
    poll(a,[f"buffer_load_dwordx4 {vr(V_F+4*p,4)}, v{V_AA2}, {ws}, s{S_OA2} offen offset:{p*1024} sc1" for p in range(2)],8,V_F)
    pcount(a,2); stamp(a,5)
    AC=[[V_ACC,V_ACC+4],[V_ACC+8,V_ACC+12]]
    for ks in range(4):
        f=vr(V_F+4*(ks>>1),4); p=ks&1
        for tl in range(2):
            a(f"v_mfma_f32_16x16x32_bf16 {vr(AC[tl][p],4)}, {vr(V_W3+(ks*2+tl)*4,4)}, {f}, {'0' if ks<2 else vr(AC[tl][p],4)}")
    a("s_nop 6")
    for tl in range(2):
        for r in range(4):
            a(f"v_add_f32_dpp v{V_P+4*tl+r}, v{AC[tl][1]+r}, v{AC[tl][0]+r} row_ror:8 row_mask:0xf bank_mask:0xf")
        if tl==0: a(f"ds_write_b128 v{V_W3A}, {vr(V_P,4)} offset:{L_S3}")
    a(f"ds_write_b128 v{V_W3A}, {vr(V_P+4,4)} offset:{L_S3+1024}")
    a("s_waitcnt lgkmcnt(0)")
    a("s_barrier")
    stamp(a,6)
    a(f"s_cmp_lg_u32 s{S_W}, 2")
    a("s_cbranch_scc1 Lrec_nored3")
    a(f"s_mov_b64 exec, s[{S_M40}:{S_M40+1}]")
    for w in range(4):
        a(f"ds_read_b128 {vr(V_ACC+4*w,4)}, v{V_R3} offset:{w*2048}")
    a("s_waitcnt lgkmcnt(2)")
    for r in range(4): a(f"v_add_f32 v{V_ACC+r}, v{V_ACC+r}, v{V_ACC+4+r}")
    a("s_waitcnt lgkmcnt(0)")
    for r in range(4): a(f"v_add_f32 v{V_ACC+8+r}, v{V_ACC+8+r}, v{V_ACC+12+r}")
    for r in range(4): a(f"v_add_f32 v{V_ACC+r}, v{V_ACC+r}, v{V_ACC+8+r}")
    a(f"buffer_store_dwordx4 {vr(V_ACC,4)}, v{V_L16}, {ws}, s{S_OC} offen sc1")
    a("s_mov_b64 exec, -1")
    stamp(a,7)
    a.label("Lrec_nored3")
    advance(a)
    a("s_barrier")
    stamp(a,8)
    a("s_branch Lrec_loop")
    a.label("Lrec_fin")
    if PROF:
        a(f"s_lshl_b32 s{S_T0}, s{S_X}, 5")
        a(f"s_add_u32 s{S_T0}, s{S_T0}, s{S_C}")
        a(f"s_lshl_b32 s{S_T0}, s{S_T0}, 3")
        a(f"s_add_u32 s{S_T0}, s{S_T0}, s{S_W}")
        a(f"s_lshl_b32 s{S_T0}, s{S_T0}, 7")
        a(f"s_add_u32 s{S_T0}, s{S_T0}, {WS_KS}")
        for i in range(20):
            a(f"v_mov_b32 v{V_T}, s{S_ACC0+i}")
            a(f"buffer_store_dword v{V_T}, v{V_ZERO}, {ws}, s{S_T0} offen offset:{4*i}")
            a("s_nop 1")
    a("s_branch Lrec_end")
    a.label("Lrec_w5")
    a("s_barrier")
    prof_init(a)
    a.label("Lrec_w5loop")
    a(f"v_add_u32 v{V_T2}, s{S_LSL}, v{V_L16}")
    for i in range(8):
        a(f"ds_read_b128 {vr(V_KX+4*i,4)}, v{V_T2} offset:{i*1024}")
    a(f"ds_read_b128 {vr(V_VX,4)}, v{V_T2} offset:8192")
    ring_offsets(a)
    a(f"s_add_u32 s{S_TGT}, s{S_S}, 1")
    a("s_waitcnt lgkmcnt(0)")
    a("s_barrier")
    stamp(a,1)
    a(f"s_cmp_eq_u32 s{S_S}, 63")
    a("s_cbranch_scc1 Lrec_fin")
    delay(a,'a1')
    poll(a,[f"buffer_load_dwordx4 {vr(V_F+4*ks,4)}, v{V_L16}, {ws}, s{S_OA1} offen offset:{ks*1024} sc1" for ks in range(4)],16,V_F)
    pcount(a,1); stamp(a,3)
    S0=V_ACC; S1=V_ACC+4; S2=V_ACC+8
    for ks in range(4):
        f=vr(V_F+4*ks,4)
        a(f"v_mfma_f32_16x16x32_bf16 {vr(S1,4)}, {vr(V_KX+4*ks,4)}, {f}, {'0' if ks==0 else vr(S1,4)}")
        a(f"v_mfma_f32_16x16x32_bf16 {vr(S2,4)}, {vr(V_KX+16+4*ks,4)}, {f}, {'0' if ks==0 else vr(S2,4)}")
        a(f"v_mfma_f32_16x16x32_bf16 {vr(S0,4)}, {f}, {f}, {vr(V_BIAS,4) if ks==0 else vr(S0,4)}")
    ldsspin(a,L_FVM,S_TGT)
    a(f"ds_read_b64 {vr(V_VM,2)}, v{V_L8} offset:{L_VM}")
    a(f"v_max3_f32 v{V_M}, v{S1}, v{S1+1}, v{S1+2}")
    a(f"v_max3_f32 v{V_T}, v{S1+3}, v{S2}, v{S2+1}")
    a(f"v_max3_f32 v{V_M}, v{V_M}, v{S2+2}, v{S2+3}")
    a(f"v_max3_f32 v{V_T}, v{V_T}, v{S0}, v{S0+1}")
    a(f"v_max3_f32 v{V_M}, v{V_M}, v{S0+2}, v{S0+3}")
    a(f"v_max_f32 v{V_M}, v{V_M}, v{V_T}")
    a(f"v_mov_b32 v{V_T}, v{V_M}")
    a("s_nop 1")
    a(f"v_permlane32_swap_b32 v{V_M}, v{V_T}")
    a(f"v_max_f32 v{V_M}, v{V_M}, v{V_T}")
    a(f"v_mov_b32 v{V_T}, v{V_M}")
    a("s_nop 1")
    a(f"v_permlane16_swap_b32 v{V_M}, v{V_T}")
    a(f"v_max_f32 v{V_M}, v{V_M}, v{V_T}")
    a(f"v_mul_f32 v{V_M}, s{S_SC}, v{V_M}")
    order=[S1,S1+1,S1+2,S1+3,S2,S2+1,S2+2,S2+3,S0,S0+1,S0+2,S0+3]
    for i,s in enumerate(order):
        a(f"v_fma_f32 v{V_E+i}, v{s}, s{S_SC}, -v{V_M}")
    for i in range(12):
        a(f"v_exp_f32 v{V_E+i}, v{V_E+i}")
    a("s_nop 0")
    for i in range(6):
        a(f"v_cvt_pk_bf16_f32 v{V_P+i}, v{V_E+2*i}, v{V_E+2*i+1}")
    a("s_waitcnt lgkmcnt(0)")
    a("s_nop 0")
    O=V_ACC2; Ls=V_ACC2+4; O2=V_ACC2+8; L2=V_ACC2+12
    a(f"v_mfma_f32_16x16x32_bf16 {vr(Ls,4)}, {vr(V_ONES,4)}, {vr(V_P,4)}, 0")
    a(f"v_mfma_f32_16x16x16_bf16 {vr(L2,4)}, {vr(V_ONES,2)}, {vr(V_P+4,2)}, 0")
    a(f"v_mfma_f32_16x16x32_bf16 {vr(O,4)}, {vr(V_VX,4)}, {vr(V_P,4)}, 0")
    a(f"v_mfma_f32_16x16x16_bf16 {vr(O2,4)}, {vr(V_VM,2)}, {vr(V_P+4,2)}, 0")
    a("s_nop 5")
    a(f"v_add_f32 v{V_T}, v{Ls}, v{L2}")
    a(f"v_rcp_f32 v{V_T}, v{V_T}")
    for r in range(4): a(f"v_add_f32 v{O+r}, v{O+r}, v{O2+r}")
    for r in range(4): a(f"v_mul_f32 v{O+r}, v{O+r}, v{V_T}")
    a(f"v_cvt_pk_bf16_f32 v{V_E}, v{O}, v{O+1}")
    a(f"v_cvt_pk_bf16_f32 v{V_E+1}, v{O+2}, v{O+3}")
    a("s_mov_b32 exec_lo, 0x00ff00ff")
    a("s_mov_b32 exec_hi, 0x00ff00ff")
    a(f"buffer_store_dwordx2 {vr(V_E,2)}, v{V_SA2}, {ws}, s{S_OA2} offen")
    a("s_barrier")
    a(f"buffer_store_dwordx2 {vr(V_SENT,2)}, v{V_SA2}, {ws}, s{S_RA2} offen")
    a("s_mov_b64 exec, -1")
    stamp(a,4)
    advance(a)
    a("s_barrier")
    a("s_barrier")
    stamp(a,8)
    a("s_branch Lrec_w5loop")
    a.label("Lrec_w6")
    a("s_barrier")
    prof_init(a)
    a.label("Lrec_w6loop")
    ring_offsets(a)
    a(f"s_add_u32 s{S_TGT}, s{S_S}, 1")
    a(f"v_mov_b32 v{V_T2}, s{S_TGT}")
    a(f"s_lshl_b32 s{S_TGT}, s{S_TGT}, 2")
    a("s_barrier")
    stamp(a,1)
    ldsspin(a,L_FV,S_TGT)
    for w in range(4):
        a(f"ds_read_b128 {vr(V_F+8*w,4)}, v{V_RV0} offset:{w*1024}")
        a(f"ds_read_b128 {vr(V_F+8*w+4,4)}, v{V_RV1} offset:{w*1024}")
    a("s_waitcnt lgkmcnt(0)")
    for k in (4,2,1):
        for i in range(k):
            for r in range(4):
                a(f"v_add_f32 v{V_F+4*i+r}, v{V_F+4*i+r}, v{V_F+4*(i+k)+r}")
    a(f"v_cvt_pk_bf16_f32 v{V_VM}, v{V_F}, v{V_F+1}")
    a(f"v_cvt_pk_bf16_f32 v{V_VM+1}, v{V_F+2}, v{V_F+3}")
    a("s_nop 1")
    a(f"v_mov_b32_dpp v{V_VM}, v{V_ZERO} quad_perm:[0,1,2,3] row_mask:0x3 bank_mask:0xf")
    a(f"v_mov_b32_dpp v{V_VM+1}, v{V_ZERO} quad_perm:[0,1,2,3] row_mask:0x3 bank_mask:0xf")
    a(f"ds_write_b64 v{V_L8}, {vr(V_VM,2)} offset:{L_VM}")
    a("s_waitcnt lgkmcnt(0)")
    a(f"ds_write_b32 v{V_ZERO}, v{V_T2} offset:{L_FVM}")
    a(f"buffer_store_dwordx2 {vr(V_VM,2)}, v{V_L8}, {ws}, s{S_VM} offen")
    stamp(a,2)
    a(f"s_cmp_eq_u32 s{S_S}, 63")
    a("s_cbranch_scc1 Lrec_fin")
    a(f"s_add_u32 s{S_T1}, s{S_OC}, 2560")
    a(f"s_mov_b64 exec, s[{S_M40}:{S_M40+1}]")
    a("s_barrier")
    a("s_barrier")
    stamp(a,6)
    delay(a,'c')
    poll(a,[f"buffer_load_dwordx4 {vr(V_F+4*i,4)}, v{V_L16}, {ws}, s{S_OC if i<4 else S_T1} offen offset:{(i&3)*640} sc1" for i in range(8)],32,V_F,f"s[{S_M40}:{S_M40+1}]")
    pcount(a,3); stamp(a,7)
    for k in (4,2,1):
        for i in range(k):
            for r in range(4):
                a(f"v_add_f32 v{V_F+4*i+r}, v{V_F+4*i+r}, v{V_F+4*(i+k)+r}")
    a(f"v_cvt_pk_bf16_f32 v{V_E}, v{V_F}, v{V_F+1}")
    a(f"v_cvt_pk_bf16_f32 v{V_E+1}, v{V_F+2}, v{V_F+3}")
    a(f"buffer_store_dwordx2 {vr(V_E,2)}, v{V_SD}, {ws}, s{S_OD} offen")
    a("s_barrier")
    a(f"buffer_store_dwordx2 {vr(V_SENT,2)}, v{V_SD}, {ws}, s{S_RD} offen")
    a("s_mov_b64 exec, -1")
    stamp(a,8)
    advance(a)
    a("s_branch Lrec_w6loop")
    a.label("Lrec_aux")
    a(f"s_lshl_b32 s{S_KXO}, s{S_H}, 13")
    a(f"s_lshl_b32 s{S_T0}, s{S_J}, 10")
    a(f"s_add_u32 s{S_VXO}, s{S_KXO}, s{S_T0}")
    a(f"s_add_u32 s{S_KXO}, s{S_KXO}, {WS_KX}")
    a(f"s_add_u32 s{S_VXO}, s{S_VXO}, {WS_VX}")
    def issue():
        for i in range(8):
            a(f"s_add_u32 m0, s{S_LSL}, {i*1024}")
            a(f"s_add_u32 s{S_T0}, s{S_KXO}, {i*1024}")
            a(f"buffer_load_dwordx4 v{V_L16}, {ws}, s{S_T0} offen lds")
        a(f"s_add_u32 m0, s{S_LSL}, 8192")
        a("s_nop 0")
        a(f"buffer_load_dwordx4 v{V_L16}, {ws}, s{S_VXO} offen lds")
        a(f"s_add_u32 s{S_KXO}, s{S_KXO}, {32*8192}")
        a(f"s_add_u32 s{S_VXO}, s{S_VXO}, {32*8192}")
        a(f"s_add_u32 s{S_LSL}, s{S_LSL}, {KXS}")
        a(f"s_cmp_eq_u32 s{S_LSL}, {L_KX+3*KXS}")
        a(f"s_cselect_b32 s{S_LSL}, {L_KX}, s{S_LSL}")
    issue(); issue()
    a("s_waitcnt vmcnt(9)")
    a("s_barrier")
    a.label("Lrec_auxloop")
    a("s_barrier")
    a(f"s_cmp_eq_u32 s{S_S}, 63")
    a("s_cbranch_scc1 Lrec_end")
    a(f"s_cmp_ge_u32 s{S_S}, 61")
    a("s_cbranch_scc1 Lrec_auxskip")
    delay(a,'aux')
    issue()
    a("s_waitcnt vmcnt(9)")
    a("s_branch Lrec_auxb")
    a.label("Lrec_auxskip")
    a("s_waitcnt vmcnt(0)")
    a.label("Lrec_auxb")
    a("s_barrier")
    a("s_barrier")
    a(f"s_add_u32 s{S_S}, s{S_S}, 1")
    a("s_barrier")
    a("s_branch Lrec_auxloop")
    a.label("Lrec_end")
    a("s_endpgm")
    return kernel_header(name)+a.text(), kernel_desc(name,NV)

def gen_init(name="init_kernel"):
    a=Asm()
    a(f"s_load_dwordx2 s[4:5], s[0:1], {ARG['ws']}")
    a("s_lshl_b32 s3, s2, 12")
    a("v_lshlrev_b32 v1, 4, v0")
    a("v_add_u32 v1, s3, v1")
    for i in range(4): a(f"v_mov_b32 v{4+i}, -1")
    a("s_waitcnt lgkmcnt(0)")
    srd(a,8,4,RING_END)
    a(f"s_mov_b32 s12, {WS_RING}")
    a(f"s_cmp_ge_u32 s2, {(RING_BYTES+4095)//4096}")
    a("s_cbranch_scc1 Linit_end")
    a("buffer_store_dwordx4 v[4:7], v1, s[8:11], s12 offen")
    a.label("Linit_end")
    a("s_endpgm")
    return kernel_header(name)+a.text(), kernel_desc(name,8)
```

```python
from common import *
import math, struct
def f32(x): return "0x%08x"%struct.unpack('<I',struct.pack('<f',x))[0]
KROW=144; KSZ=47*KROW+16
L_PRM=0; L_TBL=2048; L_KH=5120; L_UR=L_KH+2*KSZ
WSZ=L_UR+4352
L_YS=4*WSZ
LDS_BYTES=L_YS+16384
NV=128
S_WS=8; S_XS=12; S_TA=16; S_W=20; S_D0=21; S_D=22; S_LB=23; S_T0=24; S_T1=25; S_I=26; S_DT=27
def gen_ssm(name="ssm_kernel"):
    a=Asm()
    ws=f"s[{S_WS}:{S_WS+3}]"
    a("s_cmp_ge_u32 s2, 160")
    a("s_cbranch_scc1 Lssm_end")
    a(f"s_load_dwordx2 s[4:5], s[0:1], {ARG['ws']}")
    a(f"s_load_dwordx2 s[6:7], s[0:1], {ARG['x']}")
    a(f"s_load_dwordx16 s[32:47], s[0:1], {ARG['Are']}")
    a("v_lshrrev_b32 v2, 6, v0")
    a("v_and_b32 v1, 63, v0")
    a(f"v_readfirstlane_b32 s{S_W}, v2")
    a(f"s_lshl_b32 s{S_D0}, s2, 2")
    a("v_lshrrev_b32 v2, 4, v1")
    a("v_and_b32 v3, 15, v1")
    a(f"s_add_u32 s{S_D}, s{S_D0}, s{S_W}")
    a(f"s_mul_i32 s{S_LB}, s{S_W}, {WSZ}")
    a("s_waitcnt lgkmcnt(0)")
    srd(a,S_WS,4,SZ['ws']); srd(a,S_XS,6,SZ['x'])
    VU=96
    a("v_mul_u32_u24 v4, 1280, v0")
    a(f"s_lshl_b32 s{S_T0}, s{S_D0}, 1")
    for i in range(8):
        a(f"s_add_u32 s{S_T1}, s{S_T0}, {i*256*1280}")
        a(f"buffer_load_dwordx2 {vr(VU+2*i,2)}, v4, s[{S_XS}:{S_XS+3}], s{S_T1} offen")
    a("v_lshlrev_b32 v4, 2, v1")
    a(f"s_lshl_b32 s{S_T0}, s{S_D}, 8")
    for k in range(6):
        srd(a,S_TA,32+2*k,SZ['Are'])
        a(f"buffer_load_dword v{8+k}, v4, s[{S_TA}:{S_TA+3}], s{S_T0} offen")
    srd(a,S_TA,44,SZ['logdt'])
    a("v_mov_b32 v5, 0")
    a(f"s_lshl_b32 s{S_T0}, s{S_D}, 1")
    a(f"buffer_load_ushort v14, v5, s[{S_TA}:{S_TA+3}], s{S_T0} offen")
    srd(a,S_TA,46,SZ['Dskip'])
    a(f"s_lshl_b32 s{S_T0}, s{S_D0}, 1")
    a(f"buffer_load_dwordx2 v[112:113], v5, s[{S_TA}:{S_TA+3}], s{S_T0} offen")
    a("v_mov_b32 v16, 0"); a("v_mov_b32 v17, 0"); a("v_mov_b32 v18, 0"); a("v_mov_b32 v19, 0")
    a("v_lshlrev_b32 v6, 4, v1")
    a(f"v_add_u32 v6, s{S_LB}, v6")
    for hl in range(2):
        for i in range(3):
            a(f"ds_write_b128 v6, v[16:19] offset:{L_KH+hl*KSZ+i*1024}")
    a("s_mov_b64 exec, 0xffff")
    a(f"ds_write_b128 v6, v[16:19] offset:{L_UR+4096}")
    a("s_mov_b64 exec, -1")
    a("s_waitcnt vmcnt(1)")
    a("v_lshlrev_b32 v14, 16, v14")
    a(f"v_mul_f32 v14, {f32(math.log2(math.e))}, v14")
    a("v_exp_f32 v14, v14")
    a("s_nop 0")
    a("v_cvt_pk_bf16_f32 v14, v14, v14")
    a("v_lshlrev_b32 v14, 16, v14")
    a("v_lshlrev_b32 v7, 5, v1")
    a(f"v_add_u32 v7, s{S_LB}, v7")
    for hf in range(2):
        for k in range(6):
            if hf==0: a(f"v_lshlrev_b32 v{20+k}, 16, v{8+k}")
            else: a(f"v_and_b32 v{20+k}, 0xffff0000, v{8+k}")
        a("v_mul_f32 v28, v14, v20")
        a(f"v_mul_f32 v28, {f32(math.log2(math.e))}, v28")
        a("v_mul_f32 v29, v14, v21")
        a(f"v_mul_f32 v29, {f32(1/(2*math.pi))}, v29")
        a("v_mul_f32 v22, v14, v22")
        a("v_mul_f32 v23, v14, v23")
        a("v_mul_f32 v30, v24, v22")
        a("v_fma_f32 v30, -v25, v23, v30")
        a("v_mul_f32 v31, v24, v23")
        a("v_fma_f32 v31, v25, v22, v31")
        a(f"ds_write_b128 v7, v[28:31] offset:{L_PRM+hf*16}")
    a("s_waitcnt vmcnt(0)")
    a("v_sub_u32 v4, 2047, v0")
    a("v_lshlrev_b32 v4, 1, v4")
    a(f"v_add_u32 v4, {L_UR-7*512}, v4")
    for i in range(8):
        for ch in range(4):
            r=VU+2*i+(ch>>1)
            op="ds_write_b16" if ch%2==0 else "ds_write_b16_d16_hi"
            off=ch*WSZ+(7-i)*512
            if off<65536: a(f"{op} v4, v{r} offset:{off}")
            else:
                a(f"v_add_u32 v5, {ch*WSZ}, v4")
                a(f"{op} v5, v{r} offset:{(7-i)*512}")
    a("v_cvt_f32_u32 v35, v3")
    a("v_mul_f32 v32, 16.0, v35") if False else a(f"v_mul_f32 v32, {f32(16.0)}, v35")
    a(f"v_mul_f32 v33, {f32(32.0)}, v35")
    a(f"v_add_f32 v33, {f32(256.0)}, v33")
    a(f"v_mul_f32 v36, {f32(64.0)}, v35")
    a("v_cmp_le_u32 vcc, 8, v3")
    a("s_nop 1")
    a("v_cndmask_b32 v33, v33, v36, vcc")
    a(f"v_mul_f32 v34, {f32(128.0)}, v35")
    a(f"v_add_f32 v34, {f32(1024.0)}, v34")
    a("v_lshlrev_b32 v7, 4, v2")
    a(f"v_add_u32 v7, s{S_LB}, v7")
    ACC=64
    for i in range(16): a(f"v_mov_b32 v{ACC+i}, 0")
    a(f"s_mov_b32 s{S_I}, 0")
    a("s_waitcnt lgkmcnt(0)")
    a.label("Lssm_kg")
    a(f"ds_read_b128 v[28:31], v7 offset:{L_PRM}")
    a("v_add_u32 v7, 64, v7")
    a("s_waitcnt lgkmcnt(0)")
    for k,l in enumerate((32,33,34,35)):
        a(f"v_mul_f32 v{50+k}, v28, v{l}")
        a(f"v_mul_f32 v{54+k}, v29, v{l}")
    for k in range(4):
        a(f"v_exp_f32 v{50+k}, v{50+k}")
        a(f"v_fract_f32 v{54+k}, v{54+k}")
    for k in range(4):
        a(f"v_cos_f32 v{40+2*k}, v{54+k}")
        a(f"v_sin_f32 v{41+2*k}, v{54+k}")
    a("s_nop 0")
    for k in range(4):
        a(f"v_mul_f32 v{40+2*k}, v{40+2*k}, v{50+k}")
        a(f"v_mul_f32 v{41+2*k}, v{41+2*k}, v{50+k}")
    for k in range(3):
        er=40+2*k; ei=41+2*k
        a(f"v_mul_f32 v{50+2*k}, v30, v{er}")
        a(f"v_fma_f32 v{50+2*k}, -v31, v{ei}, v{50+2*k}")
        a(f"v_mul_f32 v{51+2*k}, -v30, v{ei}") if False else a(f"v_mul_f32 v{51+2*k}, v30, v{ei}")
        a(f"v_fma_f32 v{51+2*k}, -v31, v{er}, -v{51+2*k}")
    prev=(46,47)
    Bs=[prev]
    for k in range(3):
        r=56+2*k
        a(f"v_mul_f32 v{r}, v{prev[0]}, v{prev[0]}")
        a(f"v_fma_f32 v{r}, -v{prev[1]}, v{prev[1]}, v{r}")
        a(f"v_mul_f32 v{r+1}, v{prev[0]}, v{prev[1]}")
        a(f"v_add_f32 v{r+1}, v{r+1}, v{r+1}")
        prev=(r,r+1); Bs.append(prev)
    a("s_nop 1")
    Xs=[(50,51),(52,53),(52,53),(54,55)]
    for c in range(2):
        for t in range(4):
            a(f"v_mfma_f32_16x16x4_f32 {vr(ACC+4*t,4)}, v{Xs[t][c]}, v{Bs[t][c]}, {vr(ACC+4*t,4)}")
    a(f"s_add_u32 s{S_I}, s{S_I}, 1")
    a(f"s_cmp_lt_u32 s{S_I}, 32")
    a("s_cbranch_scc1 Lssm_kg")
    a("s_nop 7"); a("s_nop 7")
    for r in range(4):
        a(f"v_mov_b32_dpp v{ACC+4+r}, v{ACC+8+r} quad_perm:[0,1,2,3] row_mask:0xc bank_mask:0xf")
    a("v_lshl_add_u32 v7, v2, 6, v3")
    a("v_lshlrev_b32 v7, 2, v7")
    a(f"v_add_u32 v7, s{S_LB}, v7")
    for t,src in enumerate((ACC,ACC+4,ACC+12)):
        for r in range(4):
            a(f"ds_write_b32 v7, v{src+r} offset:{L_TBL+t*1024+r*64}")
    a("s_waitcnt lgkmcnt(0)")
    a("v_lshlrev_b32 v8, 1, v1")
    a("v_lshrrev_b32 v9, 5, v1")
    a(f"v_mul_u32_u24 v9, {KROW}, v9")
    a("v_and_b32 v10, 31, v1")
    a("v_lshl_add_u32 v9, v10, 2, v9")
    a(f"v_add_u32 v9, s{S_LB}, v9")
    a(f"s_mov_b32 s{S_I}, 0")
    a(f"s_mov_b32 s{S_T0}, {0x4300-128}")
    a.label("Lssm_ex")
    a("v_add_u32 v10, 1, v8")
    a("v_cvt_f32_u32 v11, v8")
    a("v_cvt_f32_u32 v12, v10")
    a("v_cvt_pk_bf16_f32 v11, v11, v12")
    a("v_and_b32 v12, 0xffff, v11")
    a("v_lshrrev_b32 v13, 16, v11")
    a(f"v_subrev_u32 v12, s{S_T0}, v12")
    a(f"v_subrev_u32 v13, s{S_T0}, v13")
    a("v_cmp_gt_u32 vcc, 128, v8")
    a("s_nop 1")
    a("v_cndmask_b32 v12, v12, v8, vcc")
    a("v_cndmask_b32 v13, v13, v10, vcc")
    a(f"v_lshl_add_u32 v12, v12, 2, s{S_LB}")
    a(f"v_lshl_add_u32 v13, v13, 2, s{S_LB}")
    a(f"ds_read_b32 v14, v12 offset:{L_TBL}")
    a(f"ds_read_b32 v15, v13 offset:{L_TBL}")
    a("s_waitcnt lgkmcnt(0)")
    a("v_cvt_pk_bf16_f32 v16, v14, v15")
    a("v_lshlrev_b32 v17, 16, v16")
    a("v_and_b32 v18, 0xffff0000, v16")
    a("v_sub_f32 v14, v14, v17")
    a("v_sub_f32 v15, v15, v18")
    a("v_cvt_pk_bf16_f32 v17, v14, v15")
    a(f"ds_write_b32 v9, v16 offset:{L_KH+15*KROW}")
    a(f"ds_write_b32 v9, v17 offset:{L_KH+KSZ+15*KROW}")
    a("v_add_u32 v8, 128, v8")
    a(f"v_add_u32 v9, {2*KROW}, v9")
    a(f"s_add_u32 s{S_I}, s{S_I}, 1")
    a(f"s_cmp_lt_u32 s{S_I}, 16")
    a("s_cbranch_scc1 Lssm_ex")
    a("s_waitcnt lgkmcnt(0)")
    a("s_barrier")
    a("v_lshlrev_b32 v4, 3, v2")
    a("v_sub_u32 v4, v4, v3")
    a("v_lshlrev_b32 v4, 1, v4")
    a(f"v_add_u32 v4, {L_UR+2*2047+64-160}, v4")
    a(f"v_add_u32 v4, s{S_LB}, v4")
    a(f"v_mul_u32_u24 v5, {KROW}, v3")
    a("v_lshl_add_u32 v5, v2, 4, v5")
    a(f"v_add_u32 v5, {L_KH+15*KROW}, v5")
    a(f"v_add_u32 v5, s{S_LB}, v5")
    AF=8; BF=32; CA=64
    for i in range(32): a(f"v_mov_b32 v{CA+i}, 0")
    a(f"s_mov_b32 s{S_I}, 0")
    def conv_loop(lab, nts, end):
        a.label(lab)
        for x in range(6):
            a(f"ds_read_b128 {vr(AF+4*x,4)}, v4 offset:{32*(5-x)}")
        for nt in nts:
            for ks in range(2):
                for hl in range(2):
                    a(f"ds_read_b128 {vr(BF+((nt*2+ks)*2+hl)*4,4)}, v5 offset:{nt*16*KROW+ks*64+hl*KSZ}")
        a("v_subrev_u32 v4, 128, v4")
        a(f"v_subrev_u32 v5, {KROW}, v5")
        a("s_waitcnt lgkmcnt(0)")
        for ks in range(2):
            for hl in range(2):
                for nt in nts:
                    for mt in range(4):
                        acc=vr(CA+(nt*4+mt)*4,4)
                        a(f"v_mfma_f32_16x16x32_bf16 {acc}, {vr(AF+4*(mt-2*ks+2),4)}, {vr(BF+((nt*2+ks)*2+hl)*4,4)}, {acc}")
        a(f"s_add_u32 s{S_I}, s{S_I}, 1")
        a(f"s_cmp_lt_u32 s{S_I}, {end}")
        a(f"s_cbranch_scc1 {lab}")
    conv_loop("Lssm_c1",(0,1),16)
    conv_loop("Lssm_c2",(1,),32)
    a("v_lshlrev_b32 v4, 9, v3")
    a("v_lshl_add_u32 v4, v2, 5, v4")
    a(f"s_lshl_b32 s{S_T0}, s{S_W}, 1")
    a(f"s_add_u32 s{S_T0}, s{S_T0}, {L_YS}")
    a(f"v_add_u32 v4, s{S_T0}, v4")
    a("s_nop 4")
    for nt in range(2):
        for mt in range(4):
            c=CA+(nt*4+mt)*4
            a(f"v_cvt_pk_bf16_f32 v8, v{c}, v{c+1}")
            a(f"v_cvt_pk_bf16_f32 v9, v{c+2}, v{c+3}")
            o=nt*8192+mt*128
            a(f"ds_write_b16 v4, v8 offset:{o}")
            a(f"ds_write_b16_d16_hi v4, v8 offset:{o+8}")
            a(f"ds_write_b16 v4, v9 offset:{o+16}")
            a(f"ds_write_b16_d16_hi v4, v9 offset:{o+24}")
    a("s_waitcnt lgkmcnt(0)")
    a("s_barrier")
    a("v_lshlrev_b32 v4, 3, v0")
    a(f"v_add_u32 v4, {L_YS}, v4")
    for i in range(8):
        a(f"ds_read_b64 {vr(8+2*i,2)}, v4 offset:{i*2048}")
    a("v_lshlrev_b32 v114, 16, v112"); a("v_and_b32 v115, 0xffff0000, v112")
    a("v_lshlrev_b32 v116, 16, v113"); a("v_and_b32 v117, 0xffff0000, v113")
    a("v_mul_u32_u24 v4, 1280, v0")
    a(f"s_lshl_b32 s{S_T0}, s{S_D0}, 1")
    a(f"s_add_u32 s{S_T0}, s{S_T0}, {WS_BY}")
    a("s_waitcnt lgkmcnt(0)")
    for i in range(8):
        for h in range(2):
            u=VU+2*i+h; y=8+2*i+h
            a(f"v_lshlrev_b32 v30, 16, v{u}")
            a(f"v_and_b32 v31, 0xffff0000, v{u}")
            a(f"v_mul_f32 v30, v30, v{114+2*h}")
            a(f"v_mul_f32 v31, v31, v{115+2*h}")
            a("v_cvt_pk_bf16_f32 v30, v30, v31")
            a("v_and_b32 v31, 0xffff0000, v30")
            a("v_lshlrev_b32 v30, 16, v30")
            a(f"v_lshlrev_b32 v32, 16, v{y}")
            a(f"v_and_b32 v33, 0xffff0000, v{y}")
            a("v_add_f32 v30, v30, v32")
            a("v_add_f32 v31, v31, v33")
            a(f"v_cvt_pk_bf16_f32 v{y}, v30, v31")
        a(f"s_add_u32 s{S_T1}, s{S_T0}, {i*256*1280}")
        a(f"buffer_store_dwordx2 {vr(8+2*i,2)}, v4, {ws}, s{S_T1} offen")
    a.label("Lssm_end")
    a("s_endpgm")
    return kernel_header(name)+a.text(), kernel_desc(name,NV)
```

```python
import sys
import build, qkv, att, ssm, opj, rec2 as rec
from common import *
rec.DLY=dict(d=2,a1=5,a2=2,c=12,aux=14)
parts=[opj.gen_init(), qkv.gen_qkv(), ssm.gen_ssm(), rec.gen_rec(), att.gen_att(), opj.gen_opj()]
launches=[("init_kernel",opj.INIT_GRID,256,0),("qkv_kernel",512,256,qkv.LDS_BYTES),("ssm_kernel",160,256,ssm.LDS_BYTES),
          ("rec_kernel",256,rec.NTHREADS,rec.LDS_BYTES),("att_kernel",512,256,0),("opj_kernel",256,256,opj.LDS_BYTES)]
build.build(parts,launches,"cdna_kernels/"+KNAME+".s")
```

```python
from common import *
import math, struct
import att as ATT
def f32(x): return "0x%08x"%struct.unpack('<I',struct.pack('<f',x))[0]
S_WS=8; S_BY=96; S_BW=97; S_BC=98; S_P0=99; S_P1=100; S_P2=101
WS=f"s[{S_WS}:{S_WS+3}]"
WAIT_LIMIT=200000
LDS_BYTES=160*1024
TLOG=False
HOOK_VERIFY=None; HOOK_VERDICT=None; S_SAFE=59; STAG=10; NEARLY=8
DBG=set()
WS_TLB=WS_KS+2*MB

def tl(a, idx_expr_sgpr=None, const=None):
    if not TLOG: return
    l=a.newlab("Ltl")
    a(f"s_cmp_lg_u32 s{S_BW}, 0")
    a(f"s_cbranch_scc1 {l}")
    a("s_memrealtime s[90:91]")
    a(f"s_lshl_b32 s92, s{S_BY}, 5")
    a(f"s_add_u32 s92, s92, s{S_BC}")
    a("s_lshl_b32 s92, s92, 8")
    if const is not None: a(f"s_add_u32 s92, s92, {const}")
    if idx_expr_sgpr is not None: a(f"s_add_u32 s92, s92, s{idx_expr_sgpr}")
    a("s_lshl_b32 s92, s92, 2")
    a(f"s_add_u32 s92, s92, {WS_TLB}")
    a("s_waitcnt lgkmcnt(0)")
    a("v_mov_b32 v250, s90")
    a("v_mov_b32 v251, 0")
    a("s_mov_b64 exec, 1")
    a(f"buffer_store_dword v250, v251, {WS}, s92 offen")
    a("s_mov_b64 exec, -1")
    a.label(l)

def signal_wg(a, s_off, store=False):
    l=a.newlab("Lsig")
    a("s_waitcnt vmcnt(0)")
    a("s_barrier")
    a(f"s_cmp_lg_u32 s{S_BW}, 0")
    a(f"s_cbranch_scc1 {l}")
    a("v_mov_b32 v250, 1")
    a("v_mov_b32 v251, 0")
    a("s_mov_b64 exec, 1")
    if store: a(f"buffer_store_dword v250, v251, {WS}, s{s_off} offen sc1")
    else: a(f"buffer_atomic_add v250, v251, {WS}, s{s_off} offen")
    a("s_mov_b64 exec, -1")
    a.label(l)

def wait_flag4_wg(a, s_off, sleep=10):
    l=a.newlab("Lw4"); lp=a.newlab("Lw4p"); ld=a.newlab("Lw4d")
    a(f"s_cmp_lg_u32 s{S_BW}, 0")
    a(f"s_cbranch_scc1 {l}")
    a("v_lshlrev_b32 v251, 2, v0")
    a("s_mov_b32 s92, 0")
    a("s_mov_b64 exec, 15")
    a.label(lp)
    a(f"buffer_load_dword v250, v251, {WS}, s{s_off} offen sc1")
    a("s_waitcnt vmcnt(0)")
    a("v_cmp_eq_u32 vcc, 0, v250")
    a("s_add_u32 s92, s92, 1")
    a(f"s_cbranch_vccz {ld}")
    a(f"s_sleep {sleep}")
    a(f"s_cmp_lt_u32 s92, {WAIT_LIMIT}")
    a(f"s_cbranch_scc1 {lp}")
    a.label(ld)
    a("s_mov_b64 exec, -1")
    a.label(l)
    a("s_barrier")

def wait_flag_wave(a, s_off, val, sleep=8):
    lp=a.newlab("Lwf"); ld=a.newlab("Lwfd")
    a("v_mov_b32 v251, 0")
    a("s_mov_b32 s92, 0")
    a("s_mov_b64 exec, 1")
    a.label(lp)
    a(f"buffer_load_dword v250, v251, {WS}, s{s_off} offen sc1")
    a("s_waitcnt vmcnt(0)")
    a("v_readfirstlane_b32 s93, v250")
    a("s_add_u32 s92, s92, 1")
    a(f"s_cmp_ge_u32 s93, {val}")
    a(f"s_cbranch_scc1 {ld}")
    a(f"s_sleep {sleep}")
    a(f"s_cmp_lt_u32 s92, {WAIT_LIMIT}")
    a(f"s_cbranch_scc1 {lp}")
    a.label(ld)
    a("s_mov_b64 exec, -1")

def wait_flag_wg(a, s_off, val, sleep=8):
    l=a.newlab("Lwg")
    a(f"s_cmp_lg_u32 s{S_BW}, 0")
    a(f"s_cbranch_scc1 {l}")
    wait_flag_wave(a,s_off,val,sleep)
    a.label(l)
    a("s_barrier")

def proj_phase(a, tag):
    V_X=88; V_ACC=56; V_WF=24; V_TR=16; V_TR2=20; V_DM=12; V_L16=14; V_T=15; V_T2=11; V_XA=10
    S_XS=24; S_WM=12; S_SEG=31; S_T0=32; S_T1=33; S_LOFF=37; S_OUT=38; S_LW=39; S_I=43; S_XO=44; S_FL=45
    a(f"s_load_dwordx2 s[6:7], s[0:1], {ARG['x']}")
    a(f"s_load_dwordx4 s[48:51], s[0:1], {ARG['Wq']}")
    a(f"s_load_dwordx2 s[52:53], s[0:1], {ARG['Wv']}")
    a("v_and_b32 v1, 63, v0")
    a("v_lshrrev_b32 v2, 4, v1")
    a("v_and_b32 v3, 15, v1")
    a(f"v_lshlrev_b32 v{V_L16}, 4, v1")
    a(f"v_lshrrev_b32 v{V_T}, 3, v1")
    a(f"v_and_b32 v{V_T2}, 3, v{V_T}")
    a("v_and_b32 v4, 7, v1")
    a(f"v_xor_b32 v4, v4, v{V_T2}")
    a(f"v_lshlrev_b32 v{V_T}, 13, v{V_T}")
    a(f"v_lshl_add_u32 v{V_DM}, v4, 4, v{V_T}")
    a("v_xor_b32 v4, 4, v4")
    a(f"v_lshl_add_u32 v{V_DM+1}, v4, 4, v{V_T}")
    a(f"s_mul_i32 s{S_LOFF}, s{S_BW}, {80*8192}")
    a(f"s_lshl_b32 s{S_T0}, s{S_P0}, 8")
    a(f"s_add_u32 s{S_LOFF}, s{S_LOFF}, s{S_T0}")
    a(f"s_lshl_b32 s{S_T0}, s{S_P2}, 7")
    a(f"s_add_u32 s{S_LOFF}, s{S_LOFF}, s{S_T0}")
    a(f"s_mul_i32 s{S_LW}, s{S_BW}, 10240")
    a("s_waitcnt lgkmcnt(0)")
    srd(a,S_XS,6,SZ['x'])
    a(f"s_cmp_eq_u32 s{S_P1}, 1")
    a("s_cselect_b64 s[48:49], s[50:51], s[48:49]")
    a(f"s_cmp_eq_u32 s{S_P1}, 2")
    a("s_cselect_b64 s[48:49], s[52:53], s[48:49]")
    srd(a,S_WM,48,SZ['Wq'])
    for i in range(10):
        a(f"s_add_u32 m0, s{S_LW}, {i*1024}")
        a(f"s_add_u32 s{S_T0}, s{S_LOFF}, {i*8*8192}")
        a(f"buffer_load_dwordx4 v{V_DM+(i&1)}, s[{S_WM}:{S_WM+3}], s{S_T0} offen lds")
    a(f"v_mul_u32_u24 v{V_XA}, 1280, v3")
    a(f"v_lshl_add_u32 v{V_XA}, v2, 4, v{V_XA}")
    a(f"s_add_u32 s{S_SEG}, s40, s{S_BW}")
    def xload():
        a(f"s_mul_i32 s{S_XO}, s{S_SEG}, {40*1024}")
        a(f"s_add_u32 s{S_XO}, s{S_XO}, {WS_XF}")
        for k4 in range(5):
            a(f"s_add_u32 s{S_T1}, s{S_XO}, {k4*4096}")
            a(f"s_add_u32 s47, s{S_XO}, {k4*4096+20480}")
            for k in range(4):
                ks=k4*4+k
                for tt in range(2):
                    r=V_X+(ks*2+tt)*4
                    a(f"buffer_load_dwordx4 {vr(r,4)}, v{V_L16}, {WS}, s{S_T1 if tt==0 else 47} offen offset:{k*1024}")
    lv0=a.newlab("Lxl"); lv1=a.newlab("Lxl")
    a(f"s_or_b32 s57, s94, s{S_SAFE}")
    a("s_cmp_lg_u32 s57, 0")
    a(f"s_cbranch_scc1 {lv1}")
    a(f"s_cmp_lg_u32 s{S_BW}, 7")
    a(f"s_cbranch_scc1 {lv0}")
    HOOK_VERIFY(a)
    a.label(lv0)
    a("s_waitcnt vmcnt(0)")
    a("s_barrier")
    HOOK_VERDICT(a)
    tl(a,None,4)
    a(f"s_cmp_lt_u32 s{S_BW}, {NEARLY}")
    a(f"s_cbranch_scc1 {lv1}")
    a(f"s_sleep {STAG}")
    a.label(lv1)
    xload()
    a(f"v_lshrrev_b32 v{V_T}, 2, v3")
    a("v_and_b32 v4, 1, v2")
    a(f"v_lshl_or_b32 v4, v4, 2, v{V_T}")
    a(f"v_lshl_add_u32 v5, v2, 3, v{V_T}")
    a("v_lshlrev_b32 v5, 7, v5")
    a("v_and_b32 v6, 1, v3")
    a("v_lshl_add_u32 v5, v6, 3, v5")
    a("v_bfe_u32 v6, v3, 1, 1")
    for ct in range(4):
        a(f"v_or_b32 v7, {2*ct}, v6")
        a("v_xor_b32 v7, v7, v4")
        a(f"v_lshl_add_u32 v{V_TR+ct}, v7, 4, v5")
        a(f"v_add_u32 v{V_TR2+ct}, {10*4096}, v{V_TR+ct}")
    a(f"s_mov_b32 s{S_I}, 0")
    lx=a.newlab("Lxl")
    a("s_cmp_eq_u32 s57, 0")
    a(f"s_cbranch_scc1 {lx}")
    a("s_waitcnt vmcnt(40)")
    a("s_barrier")
    a.label(lx)
    tl(a,94,6)
    def rd(ks,buf):
        if 'nolds' in DBG: return
        for ct in range(4):
            r=V_WF+buf*16+ct*4
            ad=V_TR+ct if ks<10 else V_TR2+ct; o=(ks%10)*4096
            a(f"ds_read_b64_tr_b16 {vr(r,2)}, v{ad} offset:{o}")
            a(f"ds_read_b64_tr_b16 {vr(r+2,2)}, v{ad} offset:{o+512}")
    S_FLP=46; S_XN=54; S_XN2=55
    a("v_mov_b32 v8, 1"); a("v_mov_b32 v9, 0")
    a(f"s_lshl_b32 s{S_FLP}, s{S_BY}, 5")
    a(f"s_add_u32 s{S_FLP}, s{S_FLP}, s{S_BC}")
    a(f"s_lshl_b32 s{S_FLP}, s{S_FLP}, 3")
    a(f"s_add_u32 s{S_FLP}, s{S_FLP}, s{S_BW}")
    a(f"s_lshl_b32 s{S_FLP}, s{S_FLP}, 7")
    a(f"s_add_u32 s{S_FLP}, s{S_FLP}, {WS_KS+3*MB}")
    def head(isv):
        rd(0,0)
        a(f"s_lshl_b32 s{S_OUT}, s{S_SEG}, 5")
        a(f"s_add_u32 s{S_OUT}, s{S_OUT}, s{S_P0}")
        a(f"s_lshl_b32 s{S_FL}, s{S_OUT}, 6")
        a(f"s_add_u32 s{S_FL}, s{S_FL}, s42")
        a(f"s_lshl_b32 s{S_OUT}, s{S_OUT}, 13")
        a(f"s_lshl_b32 s{S_T1}, s{S_P1}, 24")
        a(f"s_add_u32 s{S_OUT}, s{S_OUT}, s{S_T1}")
        a(f"s_lshl_b32 s{S_T1}, s{S_P2}, {12 if isv else 11}")
        a(f"s_add_u32 s{S_OUT}, s{S_OUT}, s{S_T1}")
        a(f"s_add_u32 s{S_I}, s{S_I}, 1")
        a(f"s_add_u32 s{S_T1}, s{S_SEG}, 8")
        a(f"s_cmp_ge_u32 s{S_I}, s41")
        a(f"s_cselect_b32 s{S_SEG}, s{S_SEG}, s{S_T1}")
        a(f"s_mul_i32 s{S_XO}, s{S_SEG}, {40*1024}")
        a(f"s_add_u32 s{S_XO}, s{S_XO}, {WS_XF}")
    def mf(isv,ks):
        for ct in range(4):
            for tt in range(2):
                acc=vr(V_ACC+(ct*2+tt)*4,4); w=vr(V_WF+(ks&1)*16+ct*4,4); x=vr(V_X+(ks*2+tt)*4,4)
                c="0" if ks==0 else acc
                if isv: a(f"v_mfma_f32_16x16x32_bf16 {acc}, {x}, {w}, {c}")
                else:   a(f"v_mfma_f32_16x16x32_bf16 {acc}, {w}, {x}, {c}")
    def tail(isv):
        a(f"s_add_u32 s{S_T0}, s{S_OUT}, 4096")
        a("s_nop 4")
        pk=[V_WF,V_WF+4,V_WF+8,V_WF+12]
        for i in range(4):
            if isv: A=V_ACC+(i*2)*4; B=V_ACC+(i*2+1)*4; off=i*1024; so=S_OUT
            else:
                p=i>>1; tt=i&1
                A=V_ACC+((2*p)*2+tt)*4; B=V_ACC+((2*p+1)*2+tt)*4; off=p*1024; so=S_OUT if tt==0 else S_T0
            P=pk[i]
            a(f"v_cvt_pk_bf16_f32 v{P}, v{A}, v{A+1}")
            a(f"v_cvt_pk_bf16_f32 v{P+1}, v{A+2}, v{A+3}")
            a(f"v_cvt_pk_bf16_f32 v{P+2}, v{B}, v{B+1}")
            a(f"v_cvt_pk_bf16_f32 v{P+3}, v{B+2}, v{B+3}")
            a(f"buffer_store_dwordx4 {vr(P,4)}, v{V_L16}, {WS}, s{so} offen offset:{off} sc1")
    def body(isv):
        lp=a.newlab("Lpj"); l1=a.newlab("Lpj1")
        a(f"s_cmp_ge_u32 s{S_BW}, {NEARLY}")
        a(f"s_cbranch_scc1 {l1}")
        a("s_cmp_lg_u32 s94, 0")
        a(f"s_cbranch_scc1 {l1}")
        head(isv)
        for ks in range(20):
            if ks<19: rd(ks+1,(ks+1)&1)
            a(f"s_waitcnt vmcnt({38-2*ks}) lgkmcnt({8 if ks<19 else 0})")
            mf(isv,ks)
        tail(isv)
        a("s_waitcnt vmcnt(0)")
        a("s_mov_b64 exec, 1")
        a(f"buffer_store_dword v8, v9, {WS}, s{S_FL} offen sc1")
        a("s_mov_b64 exec, -1")
        tl(a,None,5)
        xload()
        a.label(l1)
        for i in range(4): a(f"buffer_load_dword v{4+i}, v9, {WS}, s{S_FLP} offen")
        a.label(lp)
        head(isv)
        for ks in range(20):
            if ks<19: rd(ks+1,(ks+1)&1)
            cnt = 42 if ks<6 else (12 if ks==6 else 43)
            a(f"s_waitcnt vmcnt({cnt}) lgkmcnt({8 if ks<19 else 0})")
            if ks==6:
                a("s_mov_b64 exec, 1")
                a(f"buffer_store_dword v8, v9, {WS}, s{S_FLP} offen sc1")
                a("s_mov_b64 exec, -1")
            if ks%4==0:
                a(f"s_add_u32 s{S_XN}, s{S_XO}, {(ks//4)*4096}")
                a(f"s_add_u32 s{S_XN2}, s{S_XO}, {(ks//4)*4096+20480}")
            mf(isv,ks)
            for tt in range(2):
                a(f"buffer_load_dwordx4 {vr(V_X+(ks*2+tt)*4,4)}, v{V_L16}, {WS}, s{S_XN if tt==0 else S_XN2} offen offset:{(ks%4)*1024}")
        a(f"s_mov_b32 s{S_FLP}, s{S_FL}")
        tail(isv)
        a(f"s_cmp_ge_u32 s{S_I}, s41")
        a(f"s_cbranch_scc1 Lpjend_{tag}")
        a("s_nop 1")
        a(f"s_branch {lp}")
    lv=a.newlab("Lpv")
    a(f"s_cmp_eq_u32 s{S_P1}, 2")
    a(f"s_cbranch_scc1 {lv}")
    body(False)
    a.label(lv)
    body(True)
    a.label(f"Lpjend_{tag}")
    a("s_waitcnt vmcnt(0)")
    a("s_mov_b64 exec, 1")
    a(f"buffer_store_dword v8, v9, {WS}, s{S_FLP} offen sc1")
    a("s_mov_b64 exec, -1")
    a("s_barrier")

def task_ssm(a):
    KROW=144; KSZ=33*KROW+16
    URS=4384
    L_PRM=0; L_TBL=0; L_KH=6144; L_UR=L_KH+2*KSZ
    CSZ=L_UR+4*URS
    L_YS=4*CSZ
    YROW=544
    S_XS=12; S_TA=16; S_CH=20; S_HW=21; S_D0=22; S_D=23; S_LB=24; S_T0=25; S_T1=26; S_I=27
    tl(a,None,9)
    a(f"s_load_dwordx16 s[32:47], s[0:1], {ARG['Are']}")
    a("v_and_b32 v1, 63, v0")
    a(f"s_lshr_b32 s{S_CH}, s{S_BW}, 1")
    a(f"s_and_b32 s{S_HW}, s{S_BW}, 1")
    a(f"s_lshl_b32 s{S_D0}, s{S_P0}, 2")
    a("v_lshrrev_b32 v2, 4, v1")
    a("v_and_b32 v3, 15, v1")
    a(f"s_add_u32 s{S_D}, s{S_D0}, s{S_CH}")
    a(f"s_mul_i32 s{S_LB}, s{S_CH}, {CSZ}")
    VU=200
    a("v_lshrrev_b32 v4, 4, v0")
    a("v_mul_u32_u24 v4, 20480, v4")
    a("v_lshl_add_u32 v4, v3, 4, v4")
    a(f"s_lshr_b32 s{S_T0}, s{S_D0}, 3")
    a(f"s_lshl_b32 s{S_T0}, s{S_T0}, 8")
    a(f"s_and_b32 s{S_T1}, s{S_D0}, 4")
    a(f"s_lshl_b32 s{S_T1}, s{S_T1}, 1")
    a(f"s_add_u32 s{S_T0}, s{S_T0}, s{S_T1}")
    a(f"s_add_u32 s{S_T0}, s{S_T0}, {WS_XF}")
    for i in range(4):
        a(f"s_add_u32 s{S_T1}, s{S_T0}, {i*32*20480}")
        a(f"buffer_load_dwordx2 {vr(VU+2*i,2)}, v4, {WS}, s{S_T1} offen")
    a("v_lshlrev_b32 v4, 1, v1")
    a(f"s_lshl_b32 s{S_T0}, s{S_D}, 8")
    a(f"s_lshl_b32 s{S_T1}, s{S_HW}, 7")
    a(f"s_add_u32 s{S_T0}, s{S_T0}, s{S_T1}")
    a("s_waitcnt lgkmcnt(0)")
    for k in range(6):
        srd(a,S_TA,32+2*k,SZ['Are'])
        a(f"buffer_load_ushort v{20+k}, v4, s[{S_TA}:{S_TA+3}], s{S_T0} offen")
    srd(a,S_TA,44,SZ['logdt'])
    a("v_mov_b32 v5, 0")
    a(f"s_lshl_b32 s{S_T0}, s{S_D}, 1")
    a(f"buffer_load_ushort v14, v5, s[{S_TA}:{S_TA+3}], s{S_T0} offen")
    srd(a,S_TA,46,SZ['Dskip'])
    a(f"s_lshl_b32 s{S_T0}, s{S_D0}, 1")
    a(f"buffer_load_dwordx2 v[208:209], v5, s[{S_TA}:{S_TA+3}], s{S_T0} offen")
    for i in range(4): a(f"v_mov_b32 v{16+i}, 0")
    a("v_lshlrev_b32 v6, 4, v1")
    a(f"v_add_u32 v6, s{S_LB}, v6")
    a("s_mov_b64 exec, 0x1ff")
    a(f"ds_write_b128 v6, v[16:19] offset:{L_KH}")
    a(f"ds_write_b128 v6, v[16:19] offset:{L_KH+KSZ}")
    a("s_mov_b64 exec, 0xffff")
    for c in range(4):
        a(f"ds_write_b128 v6, v[16:19] offset:{L_UR+c*URS+4096}")
    a("s_mov_b64 exec, -1")
    a("s_waitcnt vmcnt(0) lgkmcnt(0)")
    a("s_barrier")
    tl(a,None,10)
    a("v_lshlrev_b32 v14, 16, v14")
    a(f"v_mul_f32 v14, {f32(math.log2(math.e))}, v14")
    a("v_exp_f32 v14, v14")
    a("s_nop 0")
    a("v_cvt_pk_bf16_f32 v14, v14, v14")
    a("v_lshlrev_b32 v14, 16, v14")
    for k in range(6): a(f"v_lshlrev_b32 v{20+k}, 16, v{20+k}")
    a("v_mul_f32 v28, v14, v20")
    a(f"v_mul_f32 v28, {f32(math.log2(math.e))}, v28")
    a("v_mul_f32 v29, v14, v21")
    a(f"v_mul_f32 v29, {f32(1/(2*math.pi))}, v29")
    a("v_mul_f32 v22, v14, v22")
    a("v_mul_f32 v23, v14, v23")
    a("v_mul_f32 v30, v24, v22")
    a("v_fma_f32 v30, -v25, v23, v30")
    a("v_mul_f32 v31, v24, v23")
    a("v_fma_f32 v31, v25, v22, v31")
    for k,l in enumerate((256.0,1024.0)):
        a(f"v_mul_f32 v40, {f32(l)}, v28")
        a(f"v_mul_f32 v41, {f32(l)}, v29")
        a("v_exp_f32 v40, v40")
        a("v_fract_f32 v41, v41")
        a("v_cos_f32 v42, v41")
        a("v_sin_f32 v43, v41")
        a("s_nop 0")
        a("v_mul_f32 v42, v42, v40")
        a("v_mul_f32 v43, v43, v40")
        a(f"v_mul_f32 v{32+2*k}, v30, v42")
        a(f"v_fma_f32 v{32+2*k}, -v31, v43, v{32+2*k}")
        a(f"v_mul_f32 v{33+2*k}, v30, v43")
        a(f"v_fma_f32 v{33+2*k}, v31, v42, v{33+2*k}")
    a("v_lshlrev_b32 v7, 5, v1")
    a(f"s_lshl_b32 s{S_T0}, s{S_HW}, 11")
    a(f"s_add_u32 s{S_T0}, s{S_T0}, s{S_LB}")
    a(f"v_add_u32 v7, s{S_T0}, v7")
    a(f"ds_write_b128 v7, v[28:31] offset:{L_PRM}")
    a(f"ds_write_b128 v7, v[32:35] offset:{L_PRM+16}")
    a("v_sub_u32 v4, 2047, v0")
    a("v_lshlrev_b32 v4, 1, v4")
    a(f"v_add_u32 v4, {L_UR-3*1024}, v4")
    for ch in range(4):
        if ch: a(f"v_add_u32 v4, {CSZ}, v4")
        op="ds_write_b16" if ch%2==0 else "ds_write_b16_d16_hi"
        for i in range(4):
            for c in range(4):
                a(f"{op} v4, v{VU+2*i+(ch>>1)} offset:{c*URS+2*c+(3-i)*1024}")
    a("v_cvt_f32_u32 v36, v3")
    a("v_cmp_le_u32 s[28:29], 8, v3")
    a("v_lshlrev_b32 v7, 5, v2")
    a(f"v_add_u32 v7, s{S_T0}, v7")
    ACC=64
    for i in range(16): a(f"v_mov_b32 v{ACC+i}, 0")
    a(f"s_mov_b32 s{S_I}, 0")
    a("s_waitcnt lgkmcnt(0)")
    a(f"ds_read_b128 v[80:83], v7 offset:{L_PRM}")
    a(f"ds_read_b128 v[84:87], v7 offset:{L_PRM+16}")
    tl(a,None,21)
    lk=a.newlab("Lskg")
    a.label(lk)
    a("v_add_u32 v7, 128, v7")
    a("s_waitcnt lgkmcnt(0)")
    a("v_mul_f32 v40, v80, v36")
    a("v_mul_f32 v41, v81, v36")
    a("v_exp_f32 v40, v40")
    a("v_fract_f32 v41, v41")
    a("v_mov_b32 v30, v82"); a("v_mov_b32 v31, v83")
    a("v_cos_f32 v90, v41")
    a("v_sin_f32 v91, v41")
    a("v_cndmask_b32 v32, v84, v82, s[28:29]")
    a("v_cndmask_b32 v33, v85, v83, s[28:29]")
    a("v_mov_b32 v34, v86"); a("v_mov_b32 v35, v87")
    a(f"ds_read_b128 v[80:83], v7 offset:{L_PRM}")
    a(f"ds_read_b128 v[84:87], v7 offset:{L_PRM+16}")
    a("v_mul_f32 v90, v90, v40")
    a("v_mul_f32 v91, v91, v40")
    prev=(90,91); Bs=[prev]
    for k in range(7):
        q=92+2*k
        a(f"v_mul_f32 v{q}, v{prev[0]}, v{prev[0]}")
        a(f"v_add_f32 v44, v{prev[0]}, v{prev[0]}")
        a(f"v_fma_f32 v{q}, -v{prev[1]}, v{prev[1]}, v{q}")
        a(f"v_mul_f32 v{q+1}, v44, v{prev[1]}")
        prev=(q,q+1); Bs.append(prev)
    a(f"v_cndmask_b32 v46, v{Bs[5][0]}, v{Bs[6][0]}, s[28:29]")
    a(f"v_cndmask_b32 v47, v{Bs[5][1]}, v{Bs[6][1]}, s[28:29]")
    for k,(W,E) in enumerate((((30,31),Bs[4]),((32,33),(46,47)),((34,35),Bs[7]))):
        x=50+2*k
        a(f"v_mul_f32 v{x}, v{W[0]}, v{E[0]}")
        a(f"v_mul_f32 v{x+1}, v{W[0]}, v{E[1]}")
        a(f"v_fma_f32 v{x}, -v{W[1]}, v{E[1]}, v{x}")
        a(f"v_fma_f32 v{x+1}, -v{W[1]}, v{E[0]}, -v{x+1}")
    a("s_nop 1")
    Xs=[(50,51),(52,53),(52,53),(54,55)]
    for c in range(2):
        for t in range(4):
            a(f"v_mfma_f32_16x16x4_f32 {vr(ACC+4*t,4)}, v{Xs[t][c]}, v{Bs[t][c]}, {vr(ACC+4*t,4)}")
    a(f"s_add_u32 s{S_I}, s{S_I}, 1")
    a(f"s_cmp_lt_u32 s{S_I}, 16")
    a(f"s_cbranch_scc1 {lk}")
    a("s_waitcnt lgkmcnt(0)")
    a("s_barrier")
    a("s_nop 7")
    for q in range(4):
        a(f"v_mov_b32_dpp v{ACC+4+q}, v{ACC+8+q} quad_perm:[0,1,2,3] row_mask:0xc bank_mask:0xf")
    a("v_lshl_add_u32 v7, v2, 6, v3")
    a("v_lshlrev_b32 v7, 2, v7")
    a(f"s_mul_i32 s{S_T0}, s{S_HW}, 3072")
    a(f"s_add_u32 s{S_T0}, s{S_T0}, s{S_LB}")
    a(f"v_add_u32 v7, s{S_T0}, v7")
    for t,src in enumerate((ACC,ACC+4,ACC+12)):
        for q in range(4):
            a(f"ds_write_b32 v7, v{src+q} offset:{L_TBL+t*1024+q*64}")
    a("s_waitcnt lgkmcnt(0)")
    a("s_barrier")
    tl(a,None,11)
    a("v_lshlrev_b32 v8, 1, v1")
    a(f"s_lshl_b32 s{S_T0}, s{S_HW}, 10")
    a(f"v_add_u32 v8, s{S_T0}, v8")
    a("v_lshrrev_b32 v9, 5, v1")
    a(f"v_mul_u32_u24 v9, {KROW}, v9")
    a("v_and_b32 v10, 31, v1")
    a("v_lshl_add_u32 v9, v10, 2, v9")
    a(f"s_mul_i32 s{S_T0}, s{S_HW}, {16*KROW}")
    a(f"s_add_u32 s{S_T0}, s{S_T0}, s{S_LB}")
    a(f"v_add_u32 v9, s{S_T0}, v9")
    a(f"s_mov_b32 s{S_I}, 0")
    a(f"s_mov_b32 s{S_T0}, {0x4300-128}")
    le=a.newlab("Lsex")
    a.label(le)
    a("v_add_u32 v10, 1, v8")
    a("v_cvt_f32_u32 v11, v8")
    a("v_cvt_f32_u32 v12, v10")
    a("v_cvt_pk_bf16_f32 v11, v11, v12")
    a("v_and_b32 v12, 0xffff, v11")
    a("v_lshrrev_b32 v13, 16, v11")
    a(f"v_subrev_u32 v12, s{S_T0}, v12")
    a(f"v_subrev_u32 v13, s{S_T0}, v13")
    a("v_cmp_gt_u32 vcc, 128, v8")
    a("s_nop 1")
    a("v_cndmask_b32 v12, v12, v8, vcc")
    a("v_cndmask_b32 v13, v13, v10, vcc")
    a(f"v_lshl_add_u32 v12, v12, 2, s{S_LB}")
    a(f"v_lshl_add_u32 v13, v13, 2, s{S_LB}")
    a(f"ds_read_b32 v14, v12 offset:{L_TBL}")
    a(f"ds_read_b32 v15, v13 offset:{L_TBL}")
    a(f"ds_read_b32 v16, v12 offset:{L_TBL+3072}")
    a(f"ds_read_b32 v17, v13 offset:{L_TBL+3072}")
    a("s_waitcnt lgkmcnt(0)")
    a("v_add_f32 v14, v14, v16")
    a("v_add_f32 v15, v15, v17")
    a("v_cvt_pk_bf16_f32 v16, v14, v15")
    a("v_lshlrev_b32 v17, 16, v16")
    a("v_and_b32 v18, 0xffff0000, v16")
    a("v_sub_f32 v14, v14, v17")
    a("v_sub_f32 v15, v15, v18")
    a("v_cvt_pk_bf16_f32 v17, v14, v15")
    a(f"ds_write_b32 v9, v16 offset:{L_KH+KROW}")
    a(f"ds_write_b32 v9, v17 offset:{L_KH+KSZ+KROW}")
    a("v_add_u32 v8, 128, v8")
    a(f"v_add_u32 v9, {2*KROW}, v9")
    a(f"s_add_u32 s{S_I}, s{S_I}, 1")
    a(f"s_cmp_lt_u32 s{S_I}, 8")
    a(f"s_cbranch_scc1 {le}")
    a("s_waitcnt lgkmcnt(0)")
    a("s_barrier")
    tl(a,None,12)
    a("v_add_u32 v6, 1, v3")
    a("v_and_b32 v6, 3, v6")
    a("v_lshlrev_b32 v4, 3, v2")
    a("v_sub_u32 v4, v4, v3")
    a("v_add_u32 v4, v4, v6")
    a("v_lshlrev_b32 v4, 1, v4")
    a(f"v_mul_u32_u24 v6, {URS}, v6")
    a("v_add_u32 v4, v4, v6")
    a(f"s_lshl_b32 s{S_T0}, s{S_HW}, 10")
    a(f"s_sub_u32 s{S_T0}, s{S_LB}, s{S_T0}")
    a(f"s_add_u32 s{S_T0}, s{S_T0}, {L_UR+2*2047+64-160}")
    a(f"v_add_u32 v4, s{S_T0}, v4")
    a("v_lshlrev_b32 v7, 4, v2")
    a(f"v_add_u32 v7, s{S_LB}, v7")
    a(f"v_add_u32 v7, {L_KH}, v7")
    a(f"s_lshl_b32 s{S_T0}, s{S_HW}, 3")
    a("v_add_u32 v5, 1, v3")
    a(f"v_subrev_u32 v5, s{S_T0}, v5")
    AF=[8,64]; BF=[32,88]; CA=120
    for i in range(32): a(f"v_mov_b32 v{CA+i}, 0")
    a(f"s_mov_b32 s{S_T1}, {KROW}")
    def rdc(buf,nts):
        for x in range(6):
            a(f"ds_read2_b64 {vr(AF[buf]+4*x,4)}, v4 offset0:{4*(5-x)} offset1:{4*(5-x)+1}")
        for nt in nts:
            a(f"v_add_u32 v152, {16*nt}, v5")
            a("v_max_i32 v152, 0, v152")
            a(f"v_mad_u32_u24 v{153+nt}, v152, s{S_T1}, v7")
            for ks in range(2):
                for hl in range(2):
                    a(f"ds_read_b128 {vr(BF[buf]+((nt*2+ks)*2+hl)*4,4)}, v{153+nt} offset:{ks*64+hl*KSZ}")
        a("v_subrev_u32 v4, 128, v4")
        a("v_subrev_u32 v5, 1, v5")
    def mfc(buf,nts):
        for ks in range(2):
            for hl in range(2):
                for nt in nts:
                    for m in range(4):
                        acc=vr(CA+(nt*4+m)*4,4)
                        a(f"v_mfma_f32_16x16x32_bf16 {acc}, {vr(AF[buf]+4*(m-2*ks+2),4)}, {vr(BF[buf]+((nt*2+ks)*2+hl)*4,4)}, {acc}")
    def seg(nts,count):
        nr=6+4*len(nts)
        lab=a.newlab("Lsc")
        a(f"s_mov_b32 s{S_I}, 0")
        a.label(lab)
        rdc(1,nts)
        a(f"s_waitcnt lgkmcnt({nr})")
        mfc(0,nts)
        rdc(0,nts)
        a(f"s_waitcnt lgkmcnt({nr})")
        mfc(1,nts)
        a(f"s_add_u32 s{S_I}, s{S_I}, 2")
        a(f"s_cmp_lt_u32 s{S_I}, {count}")
        a(f"s_cbranch_scc1 {lab}")
    l1=a.newlab("Lsh1"); lj=a.newlab("Lsj")
    a(f"s_cmp_eq_u32 s{S_HW}, 1")
    a(f"s_cbranch_scc1 {l1}")
    rdc(0,(0,1))
    seg((0,1),8)
    seg((0,),8)
    a("v_lshlrev_b32 v6, 4, v1")
    a(f"v_add_u32 v6, s{S_LB}, v6")
    a("s_nop 4")
    for m in range(4):
        a(f"ds_write_b128 v6, {vr(CA+16+4*m,4)} offset:{L_TBL+m*1024}")
    a("s_waitcnt lgkmcnt(0)")
    tl(a,None,20)
    a("s_barrier")
    a(f"s_branch {lj}")
    a.label(l1)
    rdc(0,(1,))
    seg((1,),24)
    a("v_lshlrev_b32 v6, 4, v1")
    a(f"v_add_u32 v6, s{S_LB}, v6")
    a("s_waitcnt lgkmcnt(0)")
    a("s_barrier")
    for m in range(4):
        a(f"ds_read_b128 {vr(CA+4*m,4)}, v6 offset:{L_TBL+m*1024}")
    a("s_waitcnt lgkmcnt(0)")
    for i in range(16): a(f"v_add_f32 v{CA+i}, v{CA+i}, v{CA+16+i}")
    a.label(lj)
    a(f"v_mul_u32_u24 v4, {YROW}, v3")
    a("v_lshl_add_u32 v4, v2, 5, v4")
    a(f"s_lshl_b32 s{S_T0}, s{S_CH}, 1")
    a(f"s_mul_i32 s{S_T1}, s{S_HW}, {16*YROW}")
    a(f"s_add_u32 s{S_T0}, s{S_T0}, s{S_T1}")
    a(f"s_add_u32 s{S_T0}, s{S_T0}, {L_YS}")
    a(f"v_add_u32 v4, s{S_T0}, v4")
    for m in range(4):
        c=CA+m*4
        a(f"v_cvt_pk_bf16_f32 v8, v{c}, v{c+1}")
        a(f"v_cvt_pk_bf16_f32 v9, v{c+2}, v{c+3}")
        o=m*128
        a(f"ds_write_b16 v4, v8 offset:{o}")
        a(f"ds_write_b16_d16_hi v4, v8 offset:{o+8}")
        a(f"ds_write_b16 v4, v9 offset:{o+16}")
        a(f"ds_write_b16_d16_hi v4, v9 offset:{o+24}")
    a("s_waitcnt lgkmcnt(0)")
    a("s_barrier")
    tl(a,None,13)
    a(f"s_mul_i32 s{S_T0}, s{S_BW}, {YROW}")
    a(f"s_add_u32 s{S_T0}, s{S_T0}, {L_YS}")
    a("v_lshlrev_b32 v4, 3, v1")
    a(f"v_add_u32 v4, s{S_T0}, v4")
    for i in range(4):
        a(f"ds_read_b64 {vr(8+2*i,2)}, v4 offset:{i*8*YROW}")
    a("v_lshlrev_b32 v114, 16, v208"); a("v_and_b32 v115, 0xffff0000, v208")
    a("v_lshlrev_b32 v116, 16, v209"); a("v_and_b32 v117, 0xffff0000, v209")
    a("v_lshlrev_b32 v4, 3, v0")
    a(f"s_lshl_b32 s{S_T0}, s{S_P0}, 14")
    a(f"s_add_u32 s{S_T0}, s{S_T0}, {WS_BY}")
    a("s_waitcnt lgkmcnt(0)")
    for i in range(4):
        for h in range(2):
            u=VU+2*i+h; y=8+2*i+h
            a(f"v_lshlrev_b32 v30, 16, v{u}")
            a(f"v_and_b32 v31, 0xffff0000, v{u}")
            a(f"v_mul_f32 v30, v30, v{114+2*h}")
            a(f"v_mul_f32 v31, v31, v{115+2*h}")
            a("v_cvt_pk_bf16_f32 v30, v30, v31")
            a("v_and_b32 v31, 0xffff0000, v30")
            a("v_lshlrev_b32 v30, 16, v30")
            a(f"v_lshlrev_b32 v32, 16, v{y}")
            a(f"v_and_b32 v33, 0xffff0000, v{y}")
            a("v_add_f32 v30, v30, v32")
            a("v_add_f32 v31, v31, v33")
            a(f"v_cvt_pk_bf16_f32 v{y}, v30, v31")
        a(f"s_add_u32 s{S_T1}, s{S_T0}, {i*4096}")
        a(f"buffer_store_dwordx2 {vr(8+2*i,2)}, v4, {WS}, s{S_T1} offen sc1")
    a(f"s_lshl_b32 s{S_T0}, s{S_BY}, 7")
    a(f"s_add_u32 s{S_T0}, s{S_T0}, {C5_FS}")
    signal_wg(a,S_T0)
    tl(a,None,22)

NOPJ=25; NREP=5; NATT=7
def rec_wait(a, mask, tagl, sleep):
    a("s_mov_b32 s92, 0")
    a(f"s_mov_b64 exec, {mask}")
    a.label(tagl)
    a(f"buffer_load_dword v250, v251, {WS}, s30 offen sc1")
    a("s_waitcnt vmcnt(0)")
    a("v_cmp_eq_u32 vcc, 0, v250")
    a("s_add_u32 s92, s92, 1")
    a(f"s_cbranch_vccz {tagl}d")
    a(f"s_sleep {sleep}")
    a(f"s_cmp_lt_u32 s92, {WAIT_LIMIT}")
    a(f"s_cbranch_scc1 {tagl}")
    a.label(tagl+"d")
    a("s_mov_b64 exec, -1")
def att_loop(a):
    a(f"s_sub_u32 s{S_P0}, s{S_BC}, {NOPJ}")
    a(f"v_and_b32 v{ATT.V_L16}, 63, v0")
    ATT.att_setup(a)
    a.label("Lb_attl")
    a(f"s_lshl_b32 s6, s{S_BY}, 3")
    a(f"s_add_u32 s6, s6, s{S_BW}")
    a(f"s_lshl_b32 s7, s{S_P0}, 5")
    a("s_add_u32 s6, s6, s7")
    a("s_lshl_b32 s30, s6, 6")
    a(f"s_add_u32 s30, s30, {C5_REC}")
    a("v_and_b32 v251, 63, v0")
    a("v_lshlrev_b32 v251, 2, v251")
    rec_wait(a,"0x3f","Lb_attw1",16)
    b=Asm(); b.nlab=a.nlab
    ATT.att_body(b,WS,6)
    L=b.lines
    iq=[i for i,l in enumerate(L) if "s_lshl_b32 s12, s6, 12" in l][0]
    iv=[i for i,l in enumerate(L) if f"s_add_u32 s12, s16, {WS_VX}" in l][0]
    iw=[i for i,l in enumerate(L) if "s_waitcnt vmcnt(16)" in l][0]
    a.lines+=L[:iq]+L[iv:iw]
    rec_wait(a,"0xf00","Lb_attw2",5)
    a.lines+=L[iq:iv]
    a("s_waitcnt vmcnt(8)")
    for l in L[iw+1:]:
        if "buffer_store" in l: l=l+" sc1"
        a.lines.append(l)
    a(f"s_lshl_b32 s12, s{S_P0}, 5")
    a(f"s_add_u32 s12, s12, s{S_BY}")
    a("s_lshl_b32 s12, s12, 2")
    a(f"s_add_u32 s12, s12, {C5_FO}")
    signal_wg(a,12,store=True)
    tl(a,S_P0,64)
    a(f"s_add_u32 s{S_P0}, s{S_P0}, {NATT}")
    a(f"s_cmp_lt_u32 s{S_P0}, 64")
    a("s_cbranch_scc1 Lb_attl")

def opj_loop(a):
    S_WO=12; S_OUT=16; S_TILE=21; S_SEG=24; S_T0=25; S_T1=26; S_OOFF=29; S_COL=30
    V_L16=4; V_TR=10; V_T=12; V_T2=13; V_ACC=16; V_O=40; V_W=120
    L_RED=0
    a(f"s_load_dwordx2 s[6:7], s[0:1], {ARG['Wo']}")
    a(f"s_load_dwordx2 s[32:33], s[0:1], {ARG['out']}")
    a(f"s_mul_i32 s{S_TILE}, s{S_BC}, 52")
    a(f"s_lshr_b32 s{S_TILE}, s{S_TILE}, 8")
    a(f"s_mul_i32 s{S_T0}, s{S_TILE}, {NREP}")
    a(f"s_sub_u32 s{S_SEG}, s{S_BC}, s{S_T0}")
    a(f"s_mul_i32 s{S_COL}, s{S_BY}, 320")
    a(f"s_lshl_b32 s{S_T0}, s{S_TILE}, 6")
    a(f"s_add_u32 s{S_COL}, s{S_COL}, s{S_T0}")
    a("v_and_b32 v1, 63, v0")
    a("v_lshrrev_b32 v2, 4, v1")
    a("v_and_b32 v3, 15, v1")
    a(f"v_lshlrev_b32 v{V_L16}, 4, v1")
    a(f"v_lshrrev_b32 v{V_T}, 2, v1")
    a(f"v_mul_u32_u24 v{V_T}, 1280, v{V_T}")
    a(f"v_and_b32 v{V_T2}, 3, v1")
    a(f"v_lshl_add_u32 v{V_T}, v{V_T2}, 4, v{V_T}")
    a(f"s_mul_i32 s{S_T0}, s{S_BW}, {512*1280}")
    a(f"s_add_u32 s{S_T0}, s{S_T0}, s{S_COL}")
    a(f"s_lshl_b32 s34, s{S_BW}, 14")
    a(f"v_lshrrev_b32 v{V_TR}, 2, v3")
    a(f"v_lshl_add_u32 v{V_TR}, v2, 2, v{V_TR}")
    a(f"v_lshlrev_b32 v{V_TR}, 6, v{V_TR}")
    a(f"v_and_b32 v{V_T2}, 3, v3")
    a(f"v_lshl_add_u32 v{V_TR}, v{V_T2}, 4, v{V_TR}")
    a(f"v_add_u32 v{V_TR}, s34, v{V_TR}")
    a("s_waitcnt lgkmcnt(0)")
    srd(a,S_WO,6,SZ['Wo']); srd(a,S_OUT,32,SZ['out'])
    for hf in range(2):
        for i in range(16):
            a(f"s_add_u32 m0, s34, {i*1024}")
            a(f"s_add_u32 s{S_T1}, s{S_T0}, {(hf*256+i*16)*1280}")
            a(f"buffer_load_dwordx4 v{V_T}, s[{S_WO}:{S_WO+3}], s{S_T1} offen lds")
        a("s_waitcnt vmcnt(0)")
        for k in range(8):
            for u in range(2):
                r=V_W+((hf*8+k)*2+u)*4
                a(f"ds_read_b64_tr_b16 {vr(r,2)}, v{V_TR} offset:{k*2048+u*8}")
                a(f"ds_read_b64_tr_b16 {vr(r+2,2)}, v{V_TR} offset:{k*2048+1024+u*8}")
        a("s_waitcnt lgkmcnt(0)")
    a(f"s_lshl_b32 s{S_T0}, s{S_BW}, 11")
    a(f"v_add_u32 v5, s{S_T0}, v{V_L16}")
    a(f"s_lshl_b32 s{S_T0}, s{S_BY}, 7")
    a(f"s_add_u32 s{S_T0}, s{S_T0}, {C5_FS}")
    wait_flag_wg(a,S_T0,40,sleep=32)
    a.label("Lb_opjl")
    a(f"s_lshr_b32 s{S_T0}, s{S_SEG}, 1")
    a(f"s_lshl_b32 s{S_OOFF}, s{S_T0}, 3")
    a(f"s_lshl_b32 s{S_T0}, s{S_T0}, 7")
    a(f"s_add_u32 s{S_T0}, s{S_T0}, {C5_FO}")
    a(f"s_lshl_b32 s{S_T1}, s{S_SEG}, 4")
    a(f"v_add_u32 v14, s{S_T1}, v3")
    a("v_lshlrev_b32 v15, 3, v14")
    a(f"s_mov_b32 s{S_T1}, {WS_G}")
    a(f"buffer_load_dwordx2 v[32:33], v15, {WS}, s{S_T1} offen")
    a("v_mul_u32_u24 v14, 1280, v14")
    a(f"v_add_u32 v14, s{S_COL}, v14")
    a("v_lshl_add_u32 v14, v2, 4, v14")
    a("v_lshl_add_u32 v15, v2, 15, v15")
    a(f"s_lshl_b32 s{S_T1}, s{S_COL}, 11")
    a(f"s_add_u32 s{S_T1}, s{S_T1}, {WS_BY}")
    a(f"buffer_load_dwordx2 v[36:37], v15, {WS}, s{S_T1} offen sc1")
    a(f"s_add_u32 s{S_T1}, s{S_T1}, 16384")
    a(f"buffer_load_dwordx2 v[38:39], v15, {WS}, s{S_T1} offen sc1")
    wait_flag4_wg(a,S_T0,sleep=5)
    a(f"s_add_u32 s{S_OOFF}, s{S_OOFF}, s{S_BW}")
    a(f"s_lshl_b32 s{S_OOFF}, s{S_OOFF}, 15")
    a(f"s_and_b32 s{S_T1}, s{S_SEG}, 1")
    a(f"s_lshl_b32 s{S_T1}, s{S_T1}, 12")
    a(f"s_add_u32 s{S_OOFF}, s{S_OOFF}, s{S_T1}")
    a(f"s_add_u32 s{S_OOFF}, s{S_OOFF}, {WS_OX}")
    for hh in range(4):
        a(f"s_add_u32 s34, s{S_OOFF}, {hh*8192}")
        for ks in range(4):
            a(f"buffer_load_dwordx4 {vr(V_O+(hh*4+ks)*4,4)}, v{V_L16}, {WS}, s34 offen offset:{ks*1024}")
    for hh in range(4):
        a(f"s_waitcnt vmcnt({12-4*hh})")
        for ks in range(4):
            kk=hh*4+ks
            for u in range(2):
                acc=vr(V_ACC+u*4,4)
                a(f"v_mfma_f32_16x16x32_bf16 {acc}, {vr(V_W+(kk*2+u)*4,4)}, {vr(V_O+kk*4,4)}, {'0' if kk==0 else acc}")
    a("s_nop 7")
    for i in range(2):
        a(f"ds_write_b128 v5, {vr(V_ACC+4*i,4)} offset:{i*1024}")
    a("s_waitcnt lgkmcnt(0)")
    a("s_barrier")
    a(f"s_cmp_lg_u32 s{S_BW}, 1")
    a("s_cbranch_scc1 Lb_opjn")
    for w in range(8):
        for u in range(2):
            a(f"ds_read_b128 {vr(V_O+8*w+4*u,4)}, v{V_L16} offset:{w*2048+u*1024}")
    a("s_waitcnt lgkmcnt(0)")
    for k in (4,2,1):
        for i in range(k):
            for q in range(8):
                a(f"v_add_f32 v{V_O+8*i+q}, v{V_O+8*i+q}, v{V_O+8*(i+k)+q}")
    for h in range(4):
        x0=V_O+2*h; b=36+h
        a(f"v_cvt_pk_bf16_f32 v110, v{x0}, v{x0+1}")
        a("v_lshlrev_b32 v111, 16, v110")
        a("v_and_b32 v112, 0xffff0000, v110")
        a("v_mul_f32 v111, v32, v111")
        a("v_mul_f32 v112, v32, v112")
        a("v_cvt_pk_bf16_f32 v110, v111, v112")
        a(f"v_lshlrev_b32 v113, 16, v{b}")
        a(f"v_and_b32 v114, 0xffff0000, v{b}")
        a("v_mul_f32 v113, v33, v113")
        a("v_mul_f32 v114, v33, v114")
        a("v_cvt_pk_bf16_f32 v113, v113, v114")
        a("v_lshlrev_b32 v111, 16, v110")
        a("v_and_b32 v112, 0xffff0000, v110")
        a("v_and_b32 v114, 0xffff0000, v113")
        a("v_lshlrev_b32 v113, 16, v113")
        a("v_add_f32 v111, v111, v113")
        a("v_add_f32 v112, v112, v114")
        a(f"v_cvt_pk_bf16_f32 v{116+h}, v111, v112")
    a(f"v_mov_b32 v115, v14")
    a(f"buffer_store_dwordx4 v[116:119], v115, s[{S_OUT}:{S_OUT+3}], 0 offen")
    a.label("Lb_opjn")
    tl(a,S_SEG,64)
    a(f"s_add_u32 s{S_SEG}, s{S_SEG}, {NREP}")
    a(f"s_cmp_lt_u32 s{S_SEG}, 128")
    a("s_cbranch_scc1 Lb_opjl")

def b_main(a,sX,sC,sW):
    a(f"s_sub_u32 s{S_BY}, s{sX}, 4")
    a(f"s_mov_b32 s{S_BW}, s{sW}")
    a(f"s_mov_b32 s{S_BC}, s{sC}")
    tl(a,None,0)
    a("s_mov_b32 s94, 0")
    a(f"s_lshr_b32 s{S_P0}, s{S_BC}, 2")
    a(f"s_lshl_b32 s12, s{S_BY}, 3")
    a(f"s_add_u32 s{S_P0}, s{S_P0}, s12")
    a(f"s_bfe_u32 s{S_P1}, s{S_BC}, 0x10001")
    a(f"s_add_u32 s{S_P1}, s{S_P1}, 1")
    a(f"s_and_b32 s{S_P2}, s{S_BC}, 1")
    a("s_mov_b32 s40, 0"); a("s_mov_b32 s41, 8")
    a(f"s_and_b32 s42, s{S_BC}, 3")
    a("s_lshl_b32 s42, s42, 2")
    a(f"s_add_u32 s42, s42, {C5_REC}")
    a.label("Lb_proj")
    proj_phase(a,"p")
    a("s_add_u32 s94, s94, 1")
    tl(a,94,0)
    a("s_cmp_ge_u32 s94, 2")
    a("s_cbranch_scc1 Lb_projd")
    a(f"s_bfe_u32 s40, s{S_BC}, 0x10001")
    a("s_lshl_b32 s40, s40, 5")
    a(f"s_mov_b32 s{S_P1}, 0")
    a("s_mov_b32 s41, 4")
    a(f"s_lshl_b32 s42, s{S_P2}, 2")
    a(f"s_add_u32 s42, s42, {C5_REC+16}")
    a("s_branch Lb_proj")
    a.label("Lb_projd")
    if 'projonly' in DBG: a("s_branch Lmain_end")
    a(f"s_cmp_ge_u32 s{S_BC}, {NOPJ}")
    a("s_cbranch_scc1 Lb_att")
    a(f"s_mov_b32 s95, s{S_BC}")
    a.label("Lb_ssml")
    a(f"s_mul_i32 s{S_P0}, s{S_BY}, 40")
    a(f"s_add_u32 s{S_P0}, s{S_P0}, s95")
    task_ssm(a)
    a(f"s_add_u32 s95, s95, {NOPJ}")
    a("s_cmp_lt_u32 s95, 40")
    a("s_cbranch_scc1 Lb_ssml")
    tl(a,None,3)
    opj_loop(a)
    a("s_branch Lmain_end")
    a.label("Lb_att")
    att_loop(a)
```

```python
KNAME = "gated_mix__memory_aug_recurrent_mem_tr__ssm_conv_s4__prompt"
MB = 1 << 20
ARG = dict(x=0, mem0=8, Wq=16, Wk=24, Wv=32, Wo=40, seg=48, u=56, Are=64, Aim=72, Bre=80, Bim=88,
           Cre=96, Cim=104, logdt=112, Dskip=120, gate=128, out=136, dbg=144, ws=152)
SZ = dict(x=2048*640*2, mem0=8*640*2, Wq=640*4096*2, Wk=640*4096*2, Wv=640*4096*2, Wo=4096*640*2,
          Are=640*128*2, Aim=640*128*2, Bre=640*128*2, Bim=640*128*2, Cre=640*128*2, Cim=640*128*2,
          logdt=640*2, Dskip=640*2, gate=640*2, out=2048*640*2, dbg=256, ws=256*MB)
WS_QX = 0
WS_KX = 16*MB
WS_VX = 32*MB
WS_KM = 48*MB
WS_VM = 56*MB
WS_RING = 64*MB
RING_D  = WS_RING
RING_A1 = RING_D + 4*8*10240
RING_A2 = RING_A1 + 4*32*4096
RING_C  = RING_A2 + 4*32*2048
RING_END = RING_C + 64*32*8*640
RING_BYTES = RING_END - WS_RING
WS_BY = 80*MB
WS_G  = 84*MB
WS_KS = 88*MB
WS_OX = 96*MB

class Asm:
    def __init__(self):
        self.lines = []
        self.nlab = 0
    def __call__(self, s):
        for l in s.strip("\n").split("\n"):
            self.lines.append("    " + l.strip())
    def label(self, name):
        self.lines.append(name + ":")
    def newlab(self, p="L"):
        self.nlab += 1
        return f"{p}_{self.nlab}"
    def comment(self, s):
        self.lines.append("    ; " + s)
    def text(self):
        return "\n".join(self.lines) + "\n"

def vr(a, n=1):
    return f"v{a}" if n == 1 else f"v[{a}:{a+n-1}]"
def sr(a, n=1):
    return f"s{a}" if n == 1 else f"s[{a}:{a+n-1}]"

def srd(a, d, ptr, nbytes):
    a(f"s_mov_b32 s{d}, s{ptr}")
    a(f"s_and_b32 s{d+1}, s{ptr+1}, 0xffff")
    a(f"s_mov_b32 s{d+2}, {nbytes}")
    a(f"s_mov_b32 s{d+3}, 0x00020000")

def kernel_header(name):
    return f""".text
.globl {name}
.p2align 8
.type {name},@function
{name}:
"""
def kernel_desc(name, vgpr, sgpr=102):
    acc = (vgpr + 3)//4*4
    return f""".section .rodata,"a"
.p2align 6
.amdhsa_kernel {name}
  .amdhsa_next_free_vgpr {vgpr}
  .amdhsa_next_free_sgpr {sgpr}
  .amdhsa_accum_offset {acc}
  .amdhsa_group_segment_fixed_size 0
  .amdhsa_kernarg_size 160
  .amdhsa_user_sgpr_count 2
  .amdhsa_user_sgpr_kernarg_segment_ptr 1
  .amdhsa_system_sgpr_workgroup_id_x 1
  .amdhsa_float_denorm_mode_32 3
.end_amdhsa_kernel
"""

WS_CTL = 120*MB
CTL_CU   = WS_CTL
CTL_X    = WS_CTL + 8192
CTL_Q    = CTL_X + 2048
CTL_FKV  = CTL_Q + 1024
CTL_FQ   = CTL_FKV + 2048
CTL_FR   = CTL_FQ + 2048
CTL_FO   = CTL_FR + 8192
CTL_FS   = CTL_FO + 4096
CTL_END  = CTL_FS + 1024
CTL_BYTES = CTL_END - WS_CTL

X_D  = WS_RING
X_A1 = X_D + 4*4*10240
X_A2 = X_A1 + 4*32*4096
X_C  = X_A2 + 4*32*2048
X_END = X_C + 64*32*4*640
X_BYTES = X_END - WS_RING
C4_X   = WS_CTL
C4_Q   = C4_X + 1024
C4_FKV = C4_Q + 1024
C4_FQ  = C4_FKV + 8192
C4_FR  = C4_FQ + 8192
C4_FO  = C4_FR + 8192
C4_FS  = C4_FO + 8192
C4_END = C4_FS + 1024
C4_BYTES = C4_END - WS_CTL

WS_XF = 116*MB

C5_X   = WS_CTL
C5_FS  = C5_X + 1024
C5_FO  = C5_FS + 1024
C5_REC = C5_FO + 8192
C5_END = C5_REC + 64*32*64
C5_BYTES = C5_END - WS_CTL

X_C2 = WS_RING + 2*MB
X2_END = X_C2 + 64*11*16384
X_SMALL_END = X_C
C5_POL = C5_FS + 512

X_C3 = 128*MB
C3_STEP = 32*16384
C3_ARM = 4
C5_DF = C5_X
WS_WF = 176*MB
```

```python
from common import *
import math
import rx4 as R
from rx4 import *
import bx4
FORCE_SAFE=False
NO_B=False; NO_R=False; WPF=False; CPF=True; R6=True; FAKE_XCC=False
S_DBG=4
L_VER=163840-64
ARM1=X_SMALL_END-WS_RING
ARM2=C3_ARM*C3_STEP
def init_share(a):
    a(f"s_load_dwordx2 s[12:13], s[0:1], {ARG['x']}")
    a(f"s_load_dwordx2 s[14:15], s[0:1], {ARG['gate']}")
    for i in range(4): a(f"v_mov_b32 v{24+i}, -1")
    a("v_lshlrev_b32 v20, 4, v0")
    a("s_lshl_b32 s20, s2, 13")
    a("v_add_u32 v21, s20, v20")
    a(f"s_mov_b32 s21, {X_C3}")
    a(f"buffer_store_dwordx4 v[24:27], v21, {ws}, s21 offen sc1")
    a("s_lshl_b32 s20, s2, 12")
    a("v_add_u32 v21, s20, v20")
    a(f"s_mov_b32 s22, {ARM1}")
    a("v_cmp_gt_u32 vcc, s22, v21")
    a("v_cmp_gt_u32 s[24:25], 256, v0") if False else a("v_cmp_gt_u32 s[24:25], 0x100, v0") if False else None
    a("s_movk_i32 s23, 0x100")
    a("v_cmp_gt_u32 s[24:25], s23, v0")
    a("s_and_b64 vcc, vcc, s[24:25]")
    a(f"s_mov_b32 s21, {WS_RING}")
    a("s_and_saveexec_b64 s[26:27], vcc")
    l=a.newlab("Lis")
    a(f"s_cbranch_execz {l}")
    a(f"buffer_store_dwordx4 v[24:27], v21, {ws}, s21 offen sc1")
    a.label(l)
    a("s_mov_b64 exec, s[26:27]")
    l=a.newlab("Lis")
    a(f"s_cmp_lg_u32 s{S_W}, 7")
    a(f"s_cbranch_scc1 {l}")
    a(f"s_cmp_ge_u32 s2, {(C5_BYTES+1023)//1024}")
    a(f"s_cbranch_scc1 {l}")
    for i in range(4): a(f"v_mov_b32 v{28+i}, 0")
    a("s_lshl_b32 s20, s2, 10")
    a(f"s_add_u32 s20, s20, {WS_CTL}")
    a(f"v_lshlrev_b32 v21, 4, v{V_LANE}")
    a(f"buffer_store_dwordx4 v[28:31], v21, {ws}, s20 offen sc1")
    a.label(l)
    le=a.newlab("Lis")
    a(f"s_sub_u32 s20, s{S_W}, 1")
    a("s_cmp_ge_u32 s20, 2")
    a(f"s_cbranch_scc1 {le}")
    a("v_subrev_u32 v21, 64, v0")
    a("v_lshrrev_b32 v21, 4, v21")
    a("s_lshl_b32 s20, s2, 3")
    a("v_add_u32 v21, s20, v21")
    a("v_and_b32 v22, 15, v0")
    a("v_lshlrev_b32 v22, 4, v22")
    a("v_mul_u32_u24 v23, 1280, v21")
    a("v_add_u32 v23, v23, v22")
    a("s_waitcnt lgkmcnt(0)")
    srd(a,16,12,SZ['x']); srd(a,28,14,SZ['gate'])
    for i in range(5):
        a(f"buffer_load_dwordx4 {vr(32+4*i,4)}, v23, s[16:19], 0 offen offset:{i*256}")
        a(f"buffer_load_dwordx4 {vr(52+4*i,4)}, v22, s[28:31], 0 offen offset:{i*256}")
    a("v_lshrrev_b32 v72, 4, v21")
    a("v_mul_u32_u24 v72, 20, v72")
    a("v_bfe_u32 v73, v0, 2, 2")
    a("v_add_u32 v72, v72, v73")
    a("v_lshlrev_b32 v72, 10, v72")
    a("v_and_b32 v73, 3, v0")
    a("v_lshl_add_u32 v72, v73, 8, v72")
    a("v_and_b32 v73, 15, v21")
    a("v_lshl_add_u32 v76, v73, 4, v72")
    a("v_mov_b32 v24, 0")
    a("s_waitcnt vmcnt(0)")
    for i in range(5):
        a(f"s_mov_b32 s20, {WS_XF+i*4096}")
        a(f"buffer_store_dwordx4 {vr(32+4*i,4)}, v76, {ws}, s20 offen sc1")
    for i in range(20):
        x=32+i; w=52+i
        a(f"v_lshlrev_b32 v72, 16, v{x}"); a(f"v_and_b32 v73, 0xffff0000, v{x}")
        a(f"v_lshlrev_b32 v74, 16, v{w}"); a(f"v_and_b32 v75, 0xffff0000, v{w}")
        a("v_mul_f32 v72, v72, v74"); a("v_mul_f32 v73, v73, v75")
        a("v_cvt_pk_bf16_f32 v72, v72, v73")
        a("v_and_b32 v73, 0xffff0000, v72"); a("v_lshlrev_b32 v72, 16, v72")
        a("v_add_f32 v24, v24, v72"); a("v_add_f32 v24, v24, v73")
    for sh in (8,4,2,1):
        a("s_nop 1")
        a(f"v_add_f32_dpp v24, v24, v24 row_ror:{sh} row_mask:0xf bank_mask:0xf")
    a("v_cvt_pk_bf16_f32 v24, v24, v24")
    a("v_lshlrev_b32 v24, 16, v24")
    a(f"v_mul_f32 v24, {f32(-math.log2(math.e))}, v24")
    a("v_exp_f32 v24, v24")
    a("s_nop 0")
    a("v_add_f32 v24, 1.0, v24")
    a("v_rcp_f32 v24, v24")
    a("s_nop 0")
    a("v_cvt_pk_bf16_f32 v24, v24, v24")
    a("v_lshlrev_b32 v24, 16, v24")
    a("v_sub_f32 v25, 1.0, v24")
    a("v_cvt_pk_bf16_f32 v25, v25, v25")
    a("v_lshlrev_b32 v25, 16, v25")
    a("v_lshlrev_b32 v21, 3, v21")
    a(f"s_mov_b32 s20, {WS_G}")
    a("v_cmp_eq_u32 vcc, 0, v22")
    a("s_and_saveexec_b64 s[26:27], vcc")
    a(f"buffer_store_dwordx2 v[24:25], v21, {ws}, s20 offen sc1")
    a("s_mov_b64 exec, s[26:27]")
    a.label(le)
    a("s_waitcnt lgkmcnt(0)")

def verify(a, sX, sC):
    lp=a.newlab("Lv"); ld=a.newlab("Lvd"); lo=a.newlab("Lvo")
    a(f"s_load_dwordx2 s[88:89], s[0:1], {ARG['dbg']}")
    a("v_and_b32 v240, 63, v0")
    a("v_and_b32 v241, 7, v240")
    a("v_lshlrev_b32 v241, 2, v241")
    a("s_waitcnt lgkmcnt(0)")
    srd(a,S_DBG,88,256)
    a("s_mov_b32 s90, 0")
    a("s_mov_b64 exec, 0xffff")
    a.label(lp)
    a(f"buffer_load_dword v243, v241, s[{S_DBG}:{S_DBG+3}], 0 offen offset:128 sc1")
    a(f"buffer_load_dword v242, v241, s[{S_DBG}:{S_DBG+3}], 0 offen sc1")
    a("s_waitcnt vmcnt(0)")
    for sh in (4,2,1):
        a("s_nop 1")
        a(f"v_add_u32_dpp v243, v243, v243 row_ror:{sh} row_mask:0xf bank_mask:0xf")
    a("s_nop 0")
    a("v_readlane_b32 s91, v243, 0")
    a("s_add_u32 s90, s90, 1")
    a("s_cmp_ge_u32 s91, 256")
    a(f"s_cbranch_scc1 {ld}")
    a("s_sleep 2")
    a(f"s_cmp_lt_u32 s90, {1<<22}")
    a(f"s_cbranch_scc1 {lp}")
    a.label(ld)
    a("v_cmp_ne_u32 vcc, 32, v242")
    a(f"s_mov_b32 s92, {1 if FORCE_SAFE else 0}")
    a(f"s_cbranch_vccz {lo}")
    a(f"buffer_load_dword v242, v241, s[{S_DBG}:{S_DBG+3}], 0 offen sc1")
    a("s_waitcnt vmcnt(0)")
    a("v_cmp_ne_u32 vcc, 32, v242")
    a(f"s_cbranch_vccz {lo}")
    a("s_mov_b32 s92, 1")
    a.label(lo)
    a(f"v_cmp_gt_u32 vcc, s{sX}, v240")
    a("s_nop 1")
    a("v_cndmask_b32 v243, 0, v242, vcc")
    for sh in (8,4,2,1):
        a("s_nop 1")
        a(f"v_add_u32_dpp v243, v243, v243 row_ror:{sh} row_mask:0xf bank_mask:0xf")
    a("s_nop 0")
    a("v_readlane_b32 s91, v243, 0")
    a("s_nop 3")
    a(f"s_add_u32 s91, s91, s{sC}")
    a("s_mov_b64 exec, 1")
    a("v_mov_b32 v244, s92")
    a("v_mov_b32 v245, s91")
    a("v_mov_b32 v246, 0")
    a(f"v_mov_b32 v240, {L_VER}")
    a("ds_write_b96 v240, v[244:246]")
    a("s_waitcnt lgkmcnt(0)")
    a("s_mov_b64 exec, -1")
def pol_measure0(a):
    l=a.newlab("Lpm")
    a(f"s_cmp_lg_u32 s{S_W}, 3")
    a(f"s_cbranch_scc1 {l}")
    a("s_cmp_ge_u32 s2, 16")
    a(f"s_cbranch_scc1 {l}")
    a("s_lshl_b32 s72, s2, 21")
    a(f"s_add_u32 s72, s72, {X_C3+7680}")
    a("s_mov_b64 exec, 1")
    for i in range(6):
        a(f"s_add_u32 s73, s72, {i*8192}")
        a(f"buffer_store_dword v{V_ONE}, v{V_ZERO}, {ws}, s73 offen sc1")
    a("s_waitcnt vmcnt(0)")
    a("s_mov_b32 s76, 0"); a("s_mov_b32 s77, 0")
    for i in range(6):
        a("s_memtime s[74:75]")
        a("s_waitcnt lgkmcnt(0)")
        a(f"buffer_load_dword v{V_T}, v{V_ZERO}, {ws}, s72 offen sc1")
        a("s_waitcnt vmcnt(0)")
        a("s_memtime s[78:79]")
        a("s_waitcnt lgkmcnt(0)")
        a("s_sub_u32 s78, s78, s74")
        a(f"s_add_u32 s{76+(i&1)}, s{76+(i&1)}, s78")
        a("s_add_u32 s72, s72, 8192")
    a("s_cmp_lt_u32 s76, s77")
    a("s_cselect_b32 s72, 0, 1")
    a("s_getreg_b32 s73, hwreg(HW_REG_XCC_ID)")
    a("s_bfe_u32 s73, s73, 0x10002")
    a("s_xor_b32 s72, s72, s73")
    a("s_lshl_b32 s72, s72, s2")
    a(f"v_mov_b32 v{V_T}, s72")
    a(f"buffer_atomic_or v{V_T}, v{V_ZERO}, s[{S_DBG}:{S_DBG+3}], 0 offen offset:132")
    a("s_mov_b64 exec, -1")
    a.label(l)
def verdict(a):
    a(f"v_mov_b32 v254, {L_VER}")
    a("ds_read_b64 v[252:253], v254")
    a("s_waitcnt lgkmcnt(0)")
    a("v_readfirstlane_b32 s92, v252")
    a("v_readfirstlane_b32 s91, v253")
    a("s_nop 3")
    a("s_cmp_lg_u32 s92, 0")
    a("s_cbranch_scc1 Lm_restart")

def gen_main(name=KNAME+"_kernel"):
    a=Asm()
    a("s_cmp_ge_u32 s2, 256")
    a("s_cbranch_scc1 Lmain_end0")
    if CPF:
        a("s_getpc_b64 s[90:91]")
        a("s_lshr_b32 s92, s2, 3")
        a("s_and_b32 s92, s92, 31")
        a("s_lshl_b32 s92, s92, 12")
        a("v_lshlrev_b32 v2, 3, v0")
        a("v_add_u32 v2, s92, v2")
        a("v_min_u32 v2, CODE_BYTES, v2")
        a("global_load_dword v3, v2, s[90:91]")
    a(f"s_load_dwordx2 s[4:5], s[0:1], {ARG['ws']}")
    a(f"s_load_dwordx2 s[88:89], s[0:1], {ARG['dbg']}")
    a(f"v_and_b32 v{V_LANE}, 63, v0")
    a(f"v_lshrrev_b32 v{V_T}, 6, v0")
    a(f"v_mov_b32 v{V_ZERO}, 0")
    a(f"v_mov_b32 v{V_ONE}, 1")
    a(f"v_readfirstlane_b32 s{S_W}, v{V_T}")
    a("s_waitcnt lgkmcnt(0)")
    srd(a,S_WS,4,SZ['ws'])
    srd(a,S_DBG,88,256)
    a(f"s_mov_b32 s87, s{S_W}")
    a(f"s_cmp_lg_u32 s{S_W}, 0")
    a("s_cbranch_scc1 Lm_norole")
    a("s_getreg_b32 s86, hwreg(HW_REG_XCC_ID)")
    a("s_and_b32 s86, s86, 7")
    if FAKE_XCC:
        a("s_lshr_b32 s86, s2, 4")
        a("s_min_u32 s86, s86, 6")
    a("s_lshl_b32 s85, s86, 2")
    a(f"v_mov_b32 v{V_T}, 1")
    a("s_mov_b64 exec, 1")
    a(f"buffer_atomic_add v{V_T}, v{V_ZERO}, s[{S_DBG}:{S_DBG+3}], s85 offen sc0")
    a("s_mov_b64 exec, -1")
    a.label("Lm_norole")
    init_share(a)
    a(f"s_mov_b32 s{S_W}, s87")
    if WPF:
        a(f"s_load_dwordx8 s[64:71], s[0:1], {ARG['Wq']}")
        a("v_lshlrev_b32 v20, 4, v0")
        a("s_mul_i32 s20, s2, 20480")
        a("s_waitcnt lgkmcnt(0)")
        for k,mi in enumerate((1,2,0,3)):
            srd(a,12,64+2*mi,SZ['Wq'])
            a("s_add_u32 s21, s20, 8192")
            a("s_add_u32 s22, s20, 12288")
            a(f"buffer_load_dwordx4 v[100:103], v20, s[12:15], s20 offen")
            a(f"buffer_load_dwordx4 v[104:107], v20, s[12:15], s21 offen")
            a(f"buffer_load_dwordx4 v[108:111], v20, s[12:15], s22 offen")
        a("s_waitcnt vmcnt(12)")
    else:
        a("s_waitcnt vmcnt(0)")
    a(f"s_cmp_lg_u32 s{S_W}, 0")
    a("s_cbranch_scc1 Lm_role_wait")
    a("s_mov_b64 exec, 1")
    a(f"v_mov_b32 v{V_T2}, s86")
    a(f"ds_write_b32 v{V_ZERO}, v{V_T}")
    a(f"ds_write_b32 v{V_ZERO}, v{V_T2} offset:4")
    a("s_waitcnt lgkmcnt(0)")
    a("s_mov_b64 exec, -1")
    a.label("Lm_role_wait")
    a("s_barrier")
    a(f"ds_read_b64 {vr(V_F,2)}, v{V_ZERO}")
    a("s_waitcnt lgkmcnt(0)")
    a(f"v_readfirstlane_b32 s{S_C}, v{V_F}")
    a(f"v_readfirstlane_b32 s{S_X}, v{V_F+1}")
    a(f"s_mov_b32 s{S_SAFE}, 0")
    a("s_barrier")
    a(f"s_cmp_lg_u32 s{S_W}, 6")
    a("s_cbranch_scc1 Lm_noarr")
    a("s_and_b32 s85, s2, 7")
    a("s_lshl_b32 s85, s85, 2")
    a("s_mov_b64 exec, 1")
    a(f"buffer_atomic_add v{V_ONE}, v{V_ZERO}, s[{S_DBG}:{S_DBG+3}], s85 offen offset:128")
    a("s_mov_b64 exec, -1")
    a.label("Lm_noarr")
    a(f"s_min_u32 s3, s{S_C}, 31")
    a(f"s_mov_b32 s84, s{S_C}")
    a(f"s_mov_b32 s83, s{S_X}")
    a(f"s_mov_b32 s{S_C}, s3")
    a("s_branch Lm_dispatch")
    a.label("Lm_restart")
    a("s_waitcnt vmcnt(0) lgkmcnt(0)")
    a("s_barrier")
    a(f"s_mov_b32 s{S_W}, s87")
    a(f"s_bfe_u32 s{S_X}, s91, 0x30005")
    a(f"s_and_b32 s{S_C}, s91, 31")
    a(f"s_mov_b32 s{S_SAFE}, 1")
    a(f"v_and_b32 v{V_LANE}, 63, v0")
    a(f"v_mov_b32 v{V_ZERO}, 0")
    a(f"v_mov_b32 v{V_ONE}, 1")
    a("s_setprio 0")
    a.label("Lm_dispatch")
    a(f"s_cmp_ge_u32 s{S_X}, 4")
    a("s_cbranch_scc1 Lm_b")
    a(f"ds_write_b32 v{V_ZERO}, v{V_ZERO} offset:{L_FV}")
    a(f"ds_write_b32 v{V_ZERO}, v{V_ZERO} offset:{L_FVM}")
    if NO_R: a("s_branch Lmain_end0")
    if R6:
        import rx6
        def remap(f,mp):
            def g(a):
                b=Asm(); b.nlab=a.nlab; f(b); a.nlab=b.nlab
                for x in b.lines:
                    for k,v in mp: x=x.replace(k,v)
                    a.lines.append(x)
            return g
        R.HOOK_VERIFY=remap(lambda a: verify(a,83,84),[("v[244:246]","v[84:86]")]+[(f"v{240+i}",f"v{80+i}") for i in range(8)])
        R.HOOK_VERDICT=remap(verdict,[("v[252:253]","v[44:45]"),("v252","v44"),("v253","v45"),("v254","v46")])
        rx6.r_all(a,"Lmain_end0")
    else:
        R.HOOK_VERIFY=lambda a: verify(a,83,84)
        R.HOOK_VERDICT=verdict
        R.r_all(a,"Lmain_end0")
    a.label("Lmain_end0")
    a("s_endpgm")
    a.label("Lm_b")
    if not NO_B:
        bx4.HOOK_VERIFY=lambda a: verify(a,83,84)
        bx4.HOOK_VERDICT=verdict
        bx4.S_SAFE=S_SAFE
        bx4.b_main(a,S_X,S_C,S_W)
    a.label("Lmain_end")
    a("s_endpgm")
    txt=a.text()
    if CPF: txt+=f".set CODE_BYTES, Lmain_end-{name}-64\n"
    return kernel_header(name)+txt, kernel_desc(name,NV)

def build_all(path):
    hdr = open("cdna_kernels/"+KNAME+".s.ref").read().split("; Override launch")[0]
    code,desc=gen_main()
    s=hdr+f"; @launch kernel={KNAME}_kernel grid=(256,1,1) block=(512,1,1) lds={R.LDS_BYTES}\n"+'.amdgcn_target "amdgcn-amd-amdhsa--gfx950"\n'+code+desc
    open(path,"w").write(s)
```

```python
from common import *
import math, struct
def f32(x): return "0x%08x"%struct.unpack('<I',struct.pack('<f',x))[0]
S_WS=8; S_TA=12; S_TB=16
S_X=24; S_C=25; S_H=26; S_J=27; S_W=28; S_S=29
S_OD=30; S_OA1=31; S_OA2=32; S_OC=33
S_RD=34; S_RA1=35; S_RA2=36; S_OCW=37
S_T0=38; S_T1=39; S_PC=40; S_SC=41
S_KM=44; S_VM=45; S_KXO=46; S_VXO=47; S_LSL=48; S_LSW=49
S_BD=50; S_BA1=51; S_BA2=52; S_TGT=53; S_LSD=54; S_FR=55
S_M40=56; S_FKV=58; S_SAFE=59; S_OCB=42; S_X640=43; S_POLB=18
S_MK=84
L_FV=32; L_FVM=36
L_VM=1024; L_QK=2048; L_V=10240; L_S3=18432; L_KX=30720; KXS=10240; L_ST=30720
LDS_BYTES=160*1024
V_LANE=1; V_AD=2; V_AA2=3; V_L16=4; V_SA=5; V_SD=7; V_R3=8; V_RV0=9; V_RV1=10; V_T=11; V_T2=12; V_M=13; V_L8=14; V_ADL=15
V_ZERO=6; V_ONE=16; V_WQ=17; V_RQ=17; V_W3A=8; V_FR=18; V_G=19
V_F=20
V_ACC=36
V_W1=68
V_W3=188
V_HF=20
V_KX=84
V_VX=116
V_BIAS=124; V_ONES=128; V_SENT=132; V_VM=136
V_P=140; V_E=148; V_A2=160
NV=256
POLL_LIMIT=200000
KVNEED=4
CGAP=0
NPS=8
KC=1; GC=3
OLDS4=True; OLDRETRY=True; LEAD=2; ILV=True
DPROBE=False; PRG=1
KP=(1,1,1); GP=(2,2,2)
RDELAY=0
HOOK_VERIFY=None; HOOK_VERDICT=None
EXPT='b4d'; ARMT='b4d'; NOEXP=False; NODMA=False; NOPF=False
POL=1
DLY=dict(d=3,a1=6,a2=3,c=10,aux=0,e=8,p=1)
PROF=False; TRACE_STEP=None; TLOG=False; PLOG=False; EVT=None
WS_PL=WS_KS+4*MB
WS_TL=WS_KS+MB
S_TS=60; S_TL=62; S_TRS=63; S_ACC0=64; S_PCA=80
ws=f"s[{S_WS}:{S_WS+3}]"
def delay(a,k):
    n=int(DLY[k]); f=DLY[k]-n
    if n>0: a(f"s_sleep {n}")
    if f>0.01:
        a("s_nop 15"); a("s_nop 11")
def stamp(a,k):
    if not PROF: return
    if TRACE_STEP is not None:
        l=a.newlab("Lst")
        a(f"s_cmp_lg_u32 s{S_TRS}, {TRACE_STEP}")
        a(f"s_cbranch_scc1 {l}")
        a(f"s_memrealtime s[{S_TS}:{S_TS+1}]")
        a("s_waitcnt lgkmcnt(0)")
        a(f"s_mov_b32 s{S_ACC0+k}, s{S_TS}")
        a.label(l)
        if k==8: a(f"s_add_u32 s{S_TRS}, s{S_TRS}, 1")
        return
    a(f"s_memtime s[{S_TS}:{S_TS+1}]")
    a("s_waitcnt lgkmcnt(0)")
    a(f"s_sub_u32 s{S_TS+1}, s{S_TS}, s{S_TL}")
    a(f"s_add_u32 s{S_ACC0+k}, s{S_ACC0+k}, s{S_TS+1}")
    a(f"s_mov_b32 s{S_TL}, s{S_TS}")
def pcount(a,k):
    if PROF: a(f"s_add_u32 s{S_PCA+k}, s{S_PCA+k}, s{S_PC}")
def prof_init(a):
    if not PROF: return
    for i in range(20): a(f"s_mov_b32 s{S_ACC0+i}, 0")
    a(f"s_mov_b32 s{S_TRS}, 0")
    a(f"s_memtime s[{S_TS}:{S_TS+1}]")
    a("s_waitcnt lgkmcnt(0)")
    a(f"s_mov_b32 s{S_TL}, s{S_TS}")

def ev(a,k):
    if EVT is None: return
    a(f"s_memtime s[{60+2*k}:{61+2*k}]")
def ev_dump(a, sstep_adj=0):
    if EVT is None: return
    l=a.newlab("Lev")
    a(f"s_cmp_lg_u32 s{S_S}, {EVT+sstep_adj}")
    a(f"s_cbranch_scc1 {l}")
    a(f"s_lshl_b32 s{S_T0}, s{S_X}, 5")
    a(f"s_add_u32 s{S_T0}, s{S_T0}, s{S_C}")
    a(f"s_lshl_b32 s{S_T0}, s{S_T0}, 3")
    a(f"s_add_u32 s{S_T0}, s{S_T0}, s{S_W}")
    a(f"s_lshl_b32 s{S_T0}, s{S_T0}, 6")
    a(f"s_add_u32 s{S_T0}, s{S_T0}, {WS_PL}")
    a("s_waitcnt lgkmcnt(0)")
    a("s_mov_b64 s[100:101], exec")
    a("s_mov_b64 exec, 1")
    for k in range(12):
        a(f"v_mov_b32 v255, s{60+2*k}")
        a(f"buffer_store_dword v255, v{V_ZERO}, {ws}, s{S_T0} offen offset:{4*k}")
        a("s_nop 1")
    a("s_mov_b64 exec, s[100:101]")
    a.label(l)

def pl_t(a,k):
    if not PLOG: return
    a(f"s_memtime s[{S_TS}:{S_TS+1}]")
    a("s_waitcnt lgkmcnt(0)")
    a(f"s_mov_b32 s{74+k}, s{S_TS}")
def pl_first(a):
    if not PLOG: return
    l=a.newlab("Lplf")
    a(f"s_cmp_lg_u32 s{S_PC}, 0")
    a(f"s_cbranch_scc1 {l}")
    pl_t(a,1)
    a.label(l)
    pl_t(a,2)
def pl_store(a,hop,sstep):
    if not PLOG: return
    a(f"s_lshl_b32 s77, s{S_X}, 5")
    a(f"s_add_u32 s77, s77, s{S_C}")
    a("s_lshl_b32 s77, s77, 3")
    a(f"s_add_u32 s77, s77, s{S_W}")
    a("s_lshl_b32 s77, s77, 2")
    a(f"s_add_u32 s77, s77, {hop}")
    a("s_lshl_b32 s77, s77, 6")
    a(f"s_add_u32 s77, s77, s{sstep}")
    a("s_lshl_b32 s77, s77, 4")
    a(f"s_add_u32 s77, s77, {WS_PL}")
    a("s_sub_u32 s75, s75, s74")
    a("s_sub_u32 s76, s76, s74")
    a("s_mov_b64 s[78:79], exec")
    a("s_mov_b64 exec, 1")
    a("v_mov_b32 v252, s75"); a("v_mov_b32 v253, s76"); a(f"v_mov_b32 v254, s{S_PC}"); a("v_mov_b32 v255, s74")
    a(f"buffer_store_dwordx4 v[252:255], v{V_ZERO}, {ws}, s77 offen")
    a("s_mov_b64 exec, s[78:79]")

def poll(a, loads, base, e0="-1"):
    lc=a.newlab("Lpchk"); ld=a.newlab("Lpd")
    n=len(loads)
    a(f"s_mov_b32 s{S_PC}, 0")
    pl_t(a,0)
    for l in loads: a(l)
    a.label(lc)
    a("s_waitcnt vmcnt(0)")
    pl_first(a)
    for i in range(n):
        r=base+4*i
        t=V_T if i%2==0 else V_M
        a(f"v_max3_u32 v{t}, v{r}, v{r+1}, v{r+2}")
        a(f"v_max_u32 v{t}, v{t}, v{r+3}")
        a(f"v_cmp_eq_u32 s[{S_MK+2*i}:{S_MK+2*i+1}], -1, v{t}")
    a(f"s_or_b64 vcc, s[{S_MK}:{S_MK+1}], s[{S_MK+2}:{S_MK+3}]")
    for i in range(2,n):
        a(f"s_or_b64 vcc, vcc, s[{S_MK+2*i}:{S_MK+2*i+1}]")
    a(f"s_cbranch_scc0 {ld}")
    for i in range(n):
        sk=a.newlab("Lpsk")
        a(f"s_mov_b64 exec, s[{S_MK+2*i}:{S_MK+2*i+1}]")
        a(f"s_cbranch_execz {sk}")
        a(loads[i])
        a.label(sk)
    a(f"s_mov_b64 exec, {e0}")
    a(f"s_add_u32 s{S_PC}, s{S_PC}, 1")
    a(f"s_cmp_lt_u32 s{S_PC}, {POLL_LIMIT}")
    a(f"s_cbranch_scc1 {lc}")
    a("s_waitcnt vmcnt(0)")
    a.label(ld)

def chk_list(base,n,target,taken="scc1"):
    chk=[]
    for i in range(n):
        q=base+4*i
        t=V_T if i%2==0 else V_M
        chk+=[f"v_max3_u32 v{t}, v{q}, v{q+1}, v{q+2}",f"v_max_u32 v{t}, v{t}, v{q+3}",f"v_cmp_eq_u32 s[{S_MK+2*i}:{S_MK+2*i+1}], -1, v{t}"]
    chk.append(f"s_or_b64 vcc, s[{S_MK}:{S_MK+1}], s[{S_MK+2}:{S_MK+3}]")
    for i in range(2,n): chk.append(f"s_or_b64 vcc, vcc, s[{S_MK+2*i}:{S_MK+2*i+1}]")
    chk.append(f"s_cbranch_{taken} {target}")
    return chk
def spoll(a, loads, base, mf, e0="-1", lead=3, gap=0, k=1, g=2, evb=0):
    lr=a.newlab("Lspr"); ld=a.newlab("Lspd")
    n=len(loads)
    chk=chk_list(base,n,lr)
    a(f"s_mov_b32 s{S_PC}, 0")
    pl_t(a,0)
    ev(a,evb)
    for j in range(k):
        if j: a(f"s_sleep {g}")
        for l in loads: a(l)
    a.label(ld+"_c")
    a(f"s_waitcnt vmcnt({(k-1)*n})")
    ev(a,evb+1)
    pl_first(a)
    if k>1:
        while chk: a(chk.pop(0))
    for m in mf:
        a(m)
        for _ in range(LEAD):
            if chk: a(chk.pop(0))
    while chk: a(chk.pop(0))
    a.label(ld)
    ev(a,evb+2)
    return (ld,lr,loads,e0,base,mf,gap,k)
def spoll_retry(a, h):
    ld,lr,loads,e0,base,mf,gap,k=h
    n=len(loads)
    lp=a.newlab("Lrl"); ok=a.newlab("Lrok")
    a.label(lr)
    for j in range(k-2,-1,-1):
        a(f"s_waitcnt vmcnt({j*n})")
        a(f"s_add_u32 s{S_PC}, s{S_PC}, 1")
        for c in chk_list(base,n,ok,"scc0"): a(c)
    a.label(lp)
    for i in range(n):
        sk=a.newlab("Lpsk")
        a(f"s_mov_b64 exec, s[{S_MK+2*i}:{S_MK+2*i+1}]")
        a(f"s_cbranch_execz {sk}")
        a(loads[i])
        a.label(sk)
    a(f"s_mov_b64 exec, {e0}")
    if OLDRETRY and k==1 and ld.startswith("Lspd"):
        a(f"s_add_u32 s{S_PC}, s{S_PC}, 1")
        a(f"s_cmp_lt_u32 s{S_PC}, {POLL_LIMIT}")
        a(f"s_cbranch_scc1 {ld}_c")
    a("s_waitcnt vmcnt(0)")
    a(f"s_add_u32 s{S_PC}, s{S_PC}, 1")
    for c in chk_list(base,n,ok,"scc0"): a(c)
    a(f"s_cmp_lt_u32 s{S_PC}, {POLL_LIMIT}")
    a(f"s_cbranch_scc1 {lp}")
    a.label(ok)
    pl_t(a,2)
    for m in mf: a(m)
    a(f"s_branch {ld}")

def ldsspin(a, off, tgt):
    lp=a.newlab("Lspin")
    a.label(lp)
    a(f"ds_read_b32 v{V_T}, v{V_ZERO} offset:{off}")
    a("s_waitcnt lgkmcnt(0)")
    a(f"v_readfirstlane_b32 s{S_T0}, v{V_T}")
    a("s_nop 0")
    a(f"s_cmp_ge_u32 s{S_T0}, s{tgt}")
    a(f"s_cbranch_scc0 {lp}")

def ring_offsets(a):
    a(f"s_and_b32 s{S_T0}, s{S_S}, 3")
    a(f"s_add_u32 s{S_T1}, s{S_S}, 2")
    a(f"s_and_b32 s{S_T1}, s{S_T1}, 3")
    a(f"s_lshl_b32 s{S_OA1}, s{S_T0}, 17")
    a(f"s_add_u32 s{S_OA1}, s{S_OA1}, s{S_BA1}")
    a(f"s_lshl_b32 s{S_RA1}, s{S_T1}, 17")
    a(f"s_add_u32 s{S_RA1}, s{S_RA1}, s{S_BA1}")
    a(f"s_lshl_b32 s{S_OA2}, s{S_T0}, 16")
    a(f"s_add_u32 s{S_OA2}, s{S_OA2}, s{S_BA2}")
    a(f"s_lshl_b32 s{S_RA2}, s{S_T1}, 16")
    a(f"s_add_u32 s{S_RA2}, s{S_RA2}, s{S_BA2}")
    a(f"s_add_u32 s{S_T0}, s{S_S}, 1")
    a(f"s_and_b32 s{S_T0}, s{S_T0}, 3")
    a(f"s_mul_i32 s{S_OD}, s{S_T0}, {4*10240}")
    a(f"s_add_u32 s{S_OD}, s{S_OD}, s{S_BD}")
    a(f"s_add_u32 s{S_T1}, s{S_S}, 3")
    a(f"s_and_b32 s{S_T1}, s{S_T1}, 3")
    a(f"s_mul_i32 s{S_RD}, s{S_T1}, {4*10240}")
    a(f"s_add_u32 s{S_RD}, s{S_RD}, s{S_BD}")

S_ARM=22; S_DFW=20; S_DFR=21; V_RV4=19
def c_offsets(a):
    a(f"s_and_b32 s{S_T0}, s{S_S}, 0x3c")
    a(f"s_lshr_b64 s[{S_T0}:{S_T0+1}], s[{S_POLB}:{S_POLB+1}], s{S_T0}")
    a(f"s_bfe_u32 s{S_T1}, s{S_T0}, 0x10004")
    a(f"s_and_b32 s{S_T0}, s{S_T0}, 1")
    a(f"s_lshl_b32 s{S_T0}, s{S_T0}, 13")
    a(f"s_lshl_b32 s{S_T1}, s{S_T1}, 13")
    a(f"s_lshl_b32 s{S_OC}, s{S_S}, 19")
    a(f"s_add_u32 s{S_OC}, s{S_OC}, {X_C3}")
    a(f"s_add_u32 s{S_ARM}, s{S_OC}, s{S_T1}")
    a(f"s_add_u32 s{S_ARM}, s{S_ARM}, {4*C3_STEP}")
    a(f"s_add_u32 s{S_ARM}, s{S_ARM}, s{S_X640}")
    a(f"s_add_u32 s{S_OC}, s{S_OC}, s{S_T0}")
    a(f"s_add_u32 s{S_OCW}, s{S_OC}, s{S_X640}")
    a(f"s_add_u32 s{S_OC}, s{S_OC}, s{S_OCB}")

def pol_measure(a):
    a(f"s_and_b32 s{S_T0}, s{S_C}, 15")
    a(f"s_lshl_b32 s{S_T1}, s{S_T0}, 21")
    a(f"s_lshl_b32 s80, s{S_T0}, 3")
    a(f"s_lshl_b32 s{S_T0}, s{S_X}, 1")
    a(f"s_lshr_b32 s81, s{S_C}, 4")
    a(f"s_add_u32 s{S_T0}, s{S_T0}, s81")
    a(f"s_add_u32 s80, s80, s{S_T0}")
    a("s_lshl_b32 s80, s80, 3")
    a(f"s_add_u32 s80, s80, {C5_X}")
    a(f"s_lshl_b32 s{S_T0}, s{S_T0}, 14")
    a(f"s_add_u32 s{S_T1}, s{S_T1}, s{S_T0}")
    a(f"s_add_u32 s{S_T1}, s{S_T1}, {X_C3+7680}")
    a(f"s_add_u32 s{S_T0}, s{S_T1}, 8192")
    a("s_mov_b64 exec, 1")
    a(f"buffer_store_dword v{V_ONE}, v{V_ZERO}, {ws}, s{S_T1} offen sc1")
    a(f"buffer_store_dword v{V_ONE}, v{V_ZERO}, {ws}, s{S_T0} offen sc1")
    a("s_waitcnt vmcnt(0)")
    for i,so in enumerate((S_T1,S_T0)):
        a("s_memtime s[74:75]")
        a("s_waitcnt lgkmcnt(0)")
        a(f"buffer_load_dword v{V_T}, v{V_ZERO}, {ws}, s{so} offen sc1")
        a("s_waitcnt vmcnt(0)")
        a("s_memtime s[78:79]")
        a("s_waitcnt lgkmcnt(0)")
        a("s_sub_u32 s78, s78, s74")
        a(f"s_or_b32 s{76+i}, s78, 1")
    a("v_mov_b32 v252, s76")
    a("v_mov_b32 v253, s77")
    a(f"buffer_store_dwordx2 v[252:253], v{V_ZERO}, {ws}, s80 offen sc1")
    a("s_mov_b64 exec, -1")
def pol_publish(a): pass
def pol_read(a):
    lp=a.newlab("Lpr"); ld=a.newlab("Lprd")
    a(f"s_mov_b32 s{S_T1}, {C5_X}")
    a.label(lp)
    a(f"buffer_load_dwordx4 v[252:255], v{V_L16}, {ws}, s{S_T1} offen sc1")
    a("s_waitcnt vmcnt(0)")
    a("v_min_u32 v252, v252, v254")
    a("v_min_u32 v253, v253, v255")
    a(f"v_min_u32 v{V_T}, v252, v253")
    a(f"v_cmp_eq_u32 vcc, 0, v{V_T}")
    a(f"s_cbranch_vccz {ld}")
    a("s_sleep 8")
    a(f"s_branch {lp}")
    a.label(ld)
    for qp in ("[1,0,3,2]","[2,3,0,1]"):
        a("s_nop 1")
        a(f"v_min_u32_dpp v252, v252, v252 quad_perm:{qp} row_mask:0xf bank_mask:0xf")
        a(f"v_min_u32_dpp v253, v253, v253 quad_perm:{qp} row_mask:0xf bank_mask:0xf")
    a(f"v_cmp_lt_u32 s[{S_POLB}:{S_POLB+1}], v253, v252")

def advance(a):
    a(f"s_add_u32 s{S_S}, s{S_S}, 1")
    a(f"s_add_u32 s{S_KM}, s{S_KM}, {32*4096}")
    a(f"s_add_u32 s{S_VM}, s{S_VM}, {32*4096}")
    a(f"s_add_u32 s{S_FR}, s{S_FR}, 2048")
    a(f"s_add_u32 s{S_LSL}, s{S_LSL}, {KXS}")
    a(f"s_cmp_eq_u32 s{S_LSL}, {L_KX+3*KXS}")
    a(f"s_cselect_b32 s{S_LSL}, {L_KX}, s{S_LSL}")

S_FG=64
S_PKX=20; S_PVX=21
def flag_load(a):
    a(f"s_buffer_load_dwordx4 s[{S_FG}:{S_FG+3}], {ws}, s{S_FKV} glc")
def flag_check(a):
    lp=a.newlab("Lkvw"); ld=a.newlab("Lkvd")
    a(f"s_mov_b32 s{S_PC}, 0")
    a.label(lp)
    a("s_waitcnt lgkmcnt(0)")
    a(f"s_and_b32 s{S_T0}, s{S_FG}, s{S_FG+1}")
    a(f"s_and_b32 s{S_T1}, s{S_FG+2}, s{S_FG+3}")
    a(f"s_and_b32 s{S_T0}, s{S_T0}, s{S_T1}")
    a(f"s_add_u32 s{S_PC}, s{S_PC}, 1")
    a(f"s_cmp_ge_u32 s{S_T0}, {min(KVNEED,1)}")
    a(f"s_cbranch_scc1 {ld}")
    a("s_sleep 4")
    flag_load(a)
    a(f"s_cmp_lt_u32 s{S_PC}, {POLL_LIMIT}")
    a(f"s_cbranch_scc1 {lp}")
    a.label(ld)
    a(f"s_add_u32 s{S_FKV}, s{S_FKV}, 2048")
def l2_prefetch(a):
    for i in range(16):
        a(f"s_add_u32 s{S_T0}, s{S_PKX}, {i*128}")
        a(f"s_buffer_load_dword s{68+(i&7)}, {ws}, s{S_T0} glc")
        a(f"s_add_u32 s{S_T1}, s{S_PVX}, {i*128}")
        a(f"s_buffer_load_dword s{76+(i&7)}, {ws}, s{S_T1} glc")
    a(f"s_add_u32 s{S_PKX}, s{S_PKX}, {32*8192}")
    a(f"s_add_u32 s{S_PVX}, s{S_PVX}, {32*8192}")
def dma_issue(a):
    for i in range(8):
        a(f"s_add_u32 m0, s{S_LSD}, {i*1024}")
        a(f"s_add_u32 s{S_T0}, s{S_KXO}, {i*1024}")
        a(f"buffer_load_dwordx4 v{V_L16}, {ws}, s{S_T0} offen lds")
    for i in range(2):
        a(f"s_add_u32 m0, s{S_LSD}, {8192+i*1024}")
        a(f"s_add_u32 s{S_T0}, s{S_VXO}, {i*1024}")
        a(f"buffer_load_dwordx4 v{V_L16}, {ws}, s{S_T0} offen lds")
    a(f"s_add_u32 s{S_KXO}, s{S_KXO}, {32*8192}")
    a(f"s_add_u32 s{S_VXO}, s{S_VXO}, {32*8192}")
    a(f"s_add_u32 s{S_LSD}, s{S_LSD}, {KXS}")
    a(f"s_cmp_eq_u32 s{S_LSD}, {L_KX+3*KXS}")
    a(f"s_cselect_b32 s{S_LSD}, {L_KX}, s{S_LSD}")

def kx_read(a):
    a(f"v_add_u32 v{V_T2}, s{S_LSL}, v{V_L16}")
    for i in range(10):
        a(f"ds_read_b128 {vr(V_KX+4*i,4)}, v{V_T2} offset:{i*1024}")

def hook_verdict(a):
    if not HOOK_VERDICT: return
    l=a.newlab("Lhv")
    a(f"s_cmp_lg_u32 s{S_SAFE}, 0")
    a(f"s_cbranch_scc1 {l}")
    HOOK_VERDICT(a)
    a.label(l)
def pol_first(a):
    l=a.newlab("Lpf")
    a(f"s_cmp_lg_u32 s{S_S}, 0")
    a(f"s_cbranch_scc1 {l}")
    pol_read(a)
    a.label(l)

def r_setup(a):
    a("s_setprio 3")
    tlog2(a,0)
    a(f"s_lshr_b32 s{S_T0}, s{S_C}, 2")
    a(f"s_lshl_b32 s{S_H}, s{S_X}, 3")
    a(f"s_add_u32 s{S_H}, s{S_H}, s{S_T0}")
    a(f"s_and_b32 s{S_J}, s{S_C}, 3")
    a(f"v_lshlrev_b32 v{V_L16}, 4, v{V_LANE}")
    a(f"v_lshlrev_b32 v{V_L8}, 3, v{V_LANE}")
    G=V_G; N=V_F+13; TR=V_F+14; TMP=V_F+15; FR=V_FR; HI=V_F+12; Q=V_F+10; N8=V_F+11
    a(f"v_lshrrev_b32 v{G}, 4, v{V_LANE}")
    a(f"v_and_b32 v{N}, 15, v{V_LANE}")
    a(f"s_load_dwordx8 s[64:71], s[0:1], {ARG['Wq']}")
    a(f"s_load_dwordx2 s[72:73], s[0:1], {ARG['mem0']}")
    a(f"s_mov_b32 s{S_M40}, -1")
    a(f"s_mov_b32 s{S_M40+1}, 0xff")
    a(f"s_mul_i32 s{S_BD}, s{S_X}, 10240")
    a(f"s_add_u32 s{S_BD}, s{S_BD}, {X_D}")
    a(f"s_lshl_b32 s{S_BA1}, s{S_H}, 12")
    a(f"s_add_u32 s{S_BA1}, s{S_BA1}, {X_A1}")
    a(f"s_lshr_b32 s{S_T0}, s{S_C}, 1")
    a(f"s_lshl_b32 s{S_OCB}, s{S_T0}, 15")
    a(f"s_and_b32 s{S_T0}, s{S_C}, 1")
    a(f"s_mul_i32 s{S_T0}, s{S_T0}, 640")
    a(f"s_add_u32 s{S_OCB}, s{S_OCB}, s{S_T0}")
    a(f"s_and_b32 s{S_T0}, s{S_C}, 15")
    a(f"s_lshl_b32 s{S_X640}, s{S_T0}, 15")
    a(f"s_lshr_b32 s{S_T0}, s{S_X}, 1")
    a(f"s_lshl_b32 s{S_T0}, s{S_T0}, 14")
    a(f"s_add_u32 s{S_X640}, s{S_X640}, s{S_T0}")
    a(f"s_and_b32 s{S_T0}, s{S_X}, 1")
    a(f"s_lshl_b32 s{S_T0}, s{S_T0}, 1")
    a(f"s_lshr_b32 s{S_T1}, s{S_C}, 4")
    a(f"s_add_u32 s{S_T0}, s{S_T0}, s{S_T1}")
    a(f"s_mul_i32 s{S_T0}, s{S_T0}, 1280")
    a(f"s_add_u32 s{S_X640}, s{S_X640}, s{S_T0}")
    a(f"s_lshl_b32 s{S_BA2}, s{S_X}, 14")
    a(f"s_add_u32 s{S_BA2}, s{S_BA2}, {X_A2}")
    a(f"s_mov_b32 s{S_S}, 0")
    a(f"s_lshl_b32 s{S_KM}, s{S_H}, 12")
    a(f"s_lshl_b32 s{S_T0}, s{S_J}, 10")
    a(f"s_add_u32 s{S_VM}, s{S_KM}, s{S_T0}")
    a(f"s_add_u32 s{S_KM}, s{S_KM}, {WS_KM}")
    a(f"s_add_u32 s{S_VM}, s{S_VM}, {WS_VM}")
    a(f"s_mov_b32 s{S_LSL}, {L_KX}")
    a(f"s_mov_b32 s{S_LSD}, {L_KX}")
    a(f"s_lshl_b32 s{S_KXO}, s{S_H}, 13")
    a(f"s_lshl_b32 s{S_T0}, s{S_J}, 11")
    a(f"s_add_u32 s{S_VXO}, s{S_KXO}, s{S_T0}")
    a(f"s_add_u32 s{S_KXO}, s{S_KXO}, {WS_KX}")
    a(f"s_add_u32 s{S_VXO}, s{S_VXO}, {WS_VX}")
    a(f"s_lshl_b32 s{S_FKV}, s{S_H}, 6")
    a(f"s_add_u32 s{S_FKV}, s{S_FKV}, {C5_REC}")
    a(f"s_lshl_b32 s{S_FR}, s{S_J}, 2")
    a(f"s_add_u32 s{S_FR}, s{S_FR}, s{S_FKV}")
    a(f"s_add_u32 s{S_FR}, s{S_FR}, 32")
    a(f"s_mov_b32 s{S_SC}, {f32((128**-0.5)*math.log2(math.e))}")
    a(f"v_and_b32 v{FR}, 7, v{N}")
    a(f"v_lshl_add_u32 v{FR}, v{G}, 3, v{FR}")
    a(f"v_lshlrev_b32 v{FR}, 4, v{FR}")
    a(f"v_lshrrev_b32 v{HI}, 3, v{N}")
    a(f"s_cmp_ge_u32 s{S_W}, 4")
    a("s_cbranch_scc1 Lr_hsetup")
    if RDELAY: a(f"s_sleep {RDELAY}")
    a(f"v_lshrrev_b32 v{V_T}, 2, v{V_LANE}")
    a(f"v_lshlrev_b32 v{V_T}, 13, v{V_T}")
    a(f"v_and_b32 v{V_T2}, 3, v{V_LANE}")
    a(f"v_lshl_add_u32 v{V_T}, v{V_T2}, 4, v{V_T}")
    a(f"s_mul_i32 s{S_T0}, s{S_W}, {160*8192}")
    a(f"s_lshl_b32 s{S_T1}, s{S_H}, 8")
    a(f"s_add_u32 s{S_T0}, s{S_T0}, s{S_T1}")
    a(f"s_lshl_b32 s{S_T1}, s{S_J}, 6")
    a(f"s_add_u32 s{S_T0}, s{S_T0}, s{S_T1}")
    a(f"s_mul_i32 s{S_LSW}, s{S_W}, 30720")
    a(f"s_add_u32 s{S_LSW}, s{S_LSW}, {L_ST}")
    a("s_waitcnt lgkmcnt(0)")
    for mi in range(3):
        srd(a,S_TA,64+2*mi,SZ['Wq'])
        for i in range(10):
            a(f"s_add_u32 m0, s{S_LSW}, {mi*10240+i*1024}")
            a(f"s_add_u32 s{S_T1}, s{S_T0}, {i*16*8192}")
            a(f"buffer_load_dwordx4 v{V_T}, s[{S_TA}:{S_TA+3}], s{S_T1} offen lds")
    a(f"v_mul_u32_u24 v{V_T2}, 1280, v{G}")
    a(f"v_lshl_add_u32 v{V_T2}, v{N}, 3, v{V_T2}")
    a(f"s_lshl_b32 s{S_T0}, s{S_X}, 1")
    a(f"s_lshr_b32 s{S_T1}, s{S_C}, 4")
    a(f"s_add_u32 s{S_T0}, s{S_T0}, s{S_T1}")
    a(f"s_lshl_b32 s{S_T0}, s{S_T0}, 2")
    a(f"s_add_u32 s{S_T0}, s{S_T0}, s{S_W}")
    a(f"s_mul_i32 s{S_T0}, s{S_T0}, {128*1280}")
    a(f"s_and_b32 s{S_T1}, s{S_C}, 15")
    a(f"s_mul_i32 s{S_T1}, s{S_T1}, 80")
    a(f"s_add_u32 s{S_T0}, s{S_T0}, s{S_T1}")
    srd(a,S_TB,70,SZ['Wo'])
    for i in range(32):
        a(f"s_add_u32 s{S_T1}, s{S_T0}, {i*4*1280}")
        a(f"buffer_load_dwordx2 v[{V_W3+2*i}:{V_W3+2*i+1}], v{V_T2}, s[{S_TB}:{S_TB+3}], s{S_T1} offen")
    a(f"s_mul_i32 s{S_T0}, s{S_W}, 2560")
    a(f"v_lshl_add_u32 v{V_AD}, v{HI}, 9, v{FR}")
    a(f"v_add_u32 v{V_AA2}, 0, v{V_AD}")
    a(f"v_add_u32 v{V_AD}, s{S_T0}, v{V_AD}")
    a(f"v_add_u32 v{V_ADL}, s{S_T0}, v{FR}")
    a(f"v_add_u32 v{V_ADL}, 2048, v{V_ADL}")
    a(f"s_lshr_b32 s{S_T0}, s{S_C}, 4")
    a(f"s_lshl_b32 s{S_T0}, s{S_T0}, 2")
    a(f"s_add_u32 s{S_T0}, s{S_T0}, s{S_W}")
    a(f"s_lshl_b32 s{S_T0}, s{S_T0}, 11")
    a(f"v_add_u32 v{V_AA2}, s{S_T0}, v{V_AA2}")
    a(f"s_mul_i32 s{S_T0}, s{S_W}, 3072")
    a(f"v_add_u32 v{V_W3A}, s{S_T0}, v{V_L16}")
    a(f"s_lshl_b32 s{S_T0}, s{S_W}, 11")
    a(f"v_add_u32 v{V_WQ}, s{S_T0}, v{V_L16}")
    a(f"v_lshrrev_b32 v{TR}, 2, v{N}")
    a(f"v_lshl_add_u32 v{TR}, v{G}, 3, v{TR}")
    a(f"v_lshlrev_b32 v{TR}, 6, v{TR}")
    a(f"v_and_b32 v{TMP}, 3, v{N}")
    a(f"v_lshl_add_u32 v{TR}, v{TMP}, 3, v{TR}")
    a(f"v_add_u32 v{TR}, s{S_LSW}, v{TR}")
    tlog2s(a,4)
    a("s_waitcnt vmcnt(32)")
    tlog2s(a,5)
    for mi in range(3):
        for t in range(5):
            for tl in range(2):
                r=V_W1+((t*3+mi)*2+tl)*4
                o=mi*10240+t*2048+tl*32
                a(f"ds_read_b64_tr_b16 v[{r}:{r+1}], v{TR} offset:{o}")
                a(f"ds_read_b64_tr_b16 v[{r+2}:{r+3}], v{TR} offset:{o+256}")
    a("s_waitcnt vmcnt(0) lgkmcnt(0)")
    tlog2s(a,6)
    a(f"v_add_u32 v{V_T}, s{S_LSW}, v{V_L8}")
    for i in range(32):
        a(f"ds_write_b64 v{V_T}, v[{V_W3+2*i}:{V_W3+2*i+1}] offset:{i*512}")
    a(f"v_lshrrev_b32 v{TR}, 2, v{N}")
    a(f"v_lshl_add_u32 v{TR}, v{G}, 2, v{TR}")
    a(f"v_lshlrev_b32 v{TR}, 7, v{TR}")
    a(f"v_and_b32 v{TMP}, 3, v{N}")
    a(f"v_lshl_add_u32 v{TR}, v{TMP}, 3, v{TR}")
    a(f"v_add_u32 v{TR}, s{S_LSW}, v{TR}")
    a("s_waitcnt lgkmcnt(0)")
    for ks in range(4):
        for tl in range(3):
            q=V_W3+(ks*3+tl)*4
            a(f"ds_read_b64_tr_b16 v[{q}:{q+1}], v{TR} offset:{(32*ks)*128+tl*32}")
            a(f"ds_read_b64_tr_b16 v[{q+2}:{q+3}], v{TR} offset:{(32*ks+16)*128+tl*32}")
    a(f"v_and_b32 v{V_T}, 7, v{N}")
    a(f"v_mul_u32_u24 v{V_T}, 1280, v{V_T}")
    a(f"v_lshl_add_u32 v{V_T}, v{G}, 4, v{V_T}")
    a(f"s_mul_i32 s{S_T0}, s{S_W}, 320")
    a(f"v_add_u32 v{V_T}, s{S_T0}, v{V_T}")
    a(f"v_lshl_add_u32 v{V_T2}, v{HI}, 6, v{V_T}")
    srd(a,S_TA,72,SZ['mem0'])
    a(f"buffer_load_dwordx4 v[{V_F}:{V_F+3}], v{V_T2}, s[{S_TA}:{S_TA+3}], 0 offen")
    a(f"buffer_load_dwordx4 v[{V_F+4}:{V_F+7}], v{V_T2}, s[{S_TA}:{S_TA+3}], 0 offen offset:128")
    a(f"buffer_load_dwordx4 v[{V_F+8}:{V_F+11}], v{V_T}, s[{S_TA}:{S_TA+3}], 0 offen offset:256")
    a("s_waitcnt vmcnt(0) lgkmcnt(0)")
    tlog2(a,1)
    tlog2f(a)
    a("s_barrier")
    tlog2(a,2)
    hook_verdict(a)
    a("s_barrier")
    tlog2(a,3)
    prof_init(a)
    a("s_branch Lr_cgo")
    a.label("Lr_hsetup")
    a("s_waitcnt lgkmcnt(0)")
    for i in range(4): a(f"v_mov_b32 v{V_SENT+i}, -1")
    a(f"v_lshrrev_b32 v{Q}, 3, v{V_LANE}")
    a(f"v_and_b32 v{N8}, 7, v{V_LANE}")
    a(f"s_and_b32 s{S_T0}, s{S_W}, 1")
    a(f"s_mul_i32 s{S_T1}, s{S_T0}, 640")
    a(f"v_add_u32 v{V_ADL}, s{S_T1}, v{V_L16}")
    a(f"s_mul_i32 s{S_T0}, s{S_T0}, 5")
    a(f"v_add_u32 v{V_AD}, s{S_T0}, v{Q}")
    a(f"v_and_b32 v{TMP}, 3, v{V_AD}")
    a(f"v_lshl_add_u32 v{V_R3}, v{TMP}, 4, v{N8}")
    a(f"v_lshlrev_b32 v{V_R3}, 4, v{V_R3}")
    a(f"v_lshrrev_b32 v{TMP}, 2, v{V_AD}")
    a(f"v_lshl_add_u32 v{V_R3}, v{TMP}, 10, v{V_R3}")
    a(f"v_add_u32 v{V_R3}, {L_S3}, v{V_R3}")
    a(f"s_mul_i32 s{S_T0}, s{S_C}, 20")
    a(f"v_lshlrev_b32 v{TMP}, 2, v{Q}")
    a(f"v_add_u32 v{TMP}, s{S_T0}, v{TMP}")
    a(f"v_lshrrev_b32 v{V_SD}, 3, v{TMP}")
    a(f"v_lshl_add_u32 v{V_SD}, v{V_SD}, 3, v{N8}")
    a(f"v_lshlrev_b32 v{V_SD}, 4, v{V_SD}")
    a(f"v_and_b32 v{TMP}, 7, v{TMP}")
    a(f"v_lshl_add_u32 v{V_SD}, v{TMP}, 1, v{V_SD}")
    a(f"v_add_u32 v{V_RV1}, {L_V}, v{V_L16}")
    a(f"v_xor_b32 v{V_RV0}, 512, v{V_L16}")
    a(f"v_add_u32 v{V_RV0}, {L_V}, v{V_RV0}")
    a(f"v_lshlrev_b32 v{V_RV4}, 2, v{V_LANE}")
    a(f"s_lshl_b32 s{S_DFR}, s{S_X}, 7")
    a(f"s_add_u32 s{S_DFR}, s{S_DFR}, {C5_DF}")
    a(f"s_lshl_b32 s{S_DFW}, s{S_C}, 2")
    a(f"s_add_u32 s{S_DFW}, s{S_DFW}, s{S_DFR}")
    a(f"v_mov_b32 v{V_BIAS}, 0xf149f2ca")
    a(f"v_cmp_gt_u32 vcc, 32, v{V_LANE}")
    a("s_nop 1")
    a(f"v_cndmask_b32 v{V_BIAS}, 0, v{V_BIAS}, vcc")
    for i in range(1,4): a(f"v_mov_b32 v{V_BIAS+i}, v{V_BIAS}")
    for i in range(4): a(f"v_mov_b32 v{V_ONES+i}, 0x3f803f80")
    a(f"s_lshl_b32 s{S_T0}, s{S_J}, 10")
    a(f"s_sub_u32 s{S_T1}, s{S_W}, 4")
    a(f"s_lshl_b32 s{S_T1}, s{S_T1}, 2")
    a(f"s_add_u32 s{S_T0}, s{S_T0}, s{S_T1}")
    a(f"v_add_u32 v{V_SA}, s{S_T0}, v{V_L16}")
    a(f"s_bfe_u32 s{S_T0}, s{S_W}, 0x10001")
    a(f"s_lshl_b32 s{S_T0}, s{S_T0}, 10")
    a(f"s_and_b32 s{S_T1}, s{S_W}, 1")
    a(f"s_lshl_b32 s{S_T1}, s{S_T1}, 3")
    a(f"s_add_u32 s{S_T0}, s{S_T0}, s{S_T1}")
    a(f"s_add_u32 s{S_T0}, s{S_T0}, {L_QK}")
    a(f"v_add_u32 v{V_RQ}, s{S_T0}, v{V_L16}")
    a(f"s_lshl_b32 s{S_T0}, s{S_C}, 9")
    a(f"v_add_u32 v{V_AA2}, s{S_T0}, v{FR}")
    if HOOK_VERIFY:
        l=a.newlab("Lrp")
        a(f"s_cmp_lg_u32 s{S_W}, 4")
        a(f"s_cbranch_scc1 {l}")
        a(f"s_cmp_lg_u32 s{S_SAFE}, 0")
        a(f"s_cbranch_scc1 {l}")
        HOOK_VERIFY(a)
        a.label(l)
    a("s_waitcnt vmcnt(0)")
    tlog2(a,1)
    a("s_barrier")
    hook_verdict(a)
    l=a.newlab("Lrp")
    a(f"s_cmp_lg_u32 s{S_W}, 4")
    a(f"s_cbranch_scc1 {l}")
    pol_measure(a)
    pol_publish(a)
    tlog2(a,6)
    a.label(l)
    l=a.newlab("Lrp")
    a(f"s_cmp_lg_u32 s{S_W}, 7")
    a(f"s_cbranch_scc1 {l}")
    flag_load(a); flag_check(a); tlog2(a,4); dma_issue(a)
    flag_load(a); flag_check(a); tlog2(a,5); dma_issue(a)
    a(f"s_lshl_b32 s{S_T0}, s{S_J}, 11")
    a(f"s_add_u32 s{S_PKX}, s{S_KXO}, s{S_T0}")
    a(f"s_mov_b32 s{S_PVX}, s{S_VXO}")
    flag_load(a); flag_check(a); l2_prefetch(a)
    flag_load(a)
    a("s_waitcnt vmcnt(10) lgkmcnt(0)")
    a.label(l)
    a("s_barrier")
    prof_init(a)
    a("s_branch Lr_hgo")

def tlog2(a,k):
    if not TLOG: return
    a(f"s_memrealtime s[{S_TS}:{S_TS+1}]")
    a(f"s_lshl_b32 s{S_T0}, s{S_X}, 5")
    a(f"s_add_u32 s{S_T0}, s{S_T0}, s{S_C}")
    a(f"s_lshl_b32 s{S_T0}, s{S_T0}, 3")
    a(f"s_add_u32 s{S_T0}, s{S_T0}, s{S_W}")
    a(f"s_lshl_b32 s{S_T0}, s{S_T0}, 5")
    a(f"s_add_u32 s{S_T0}, s{S_T0}, {WS_TL+65536+4*k}")
    a("s_waitcnt lgkmcnt(0)")
    a(f"v_mov_b32 v{V_M}, s{S_TS}")
    a("s_mov_b64 exec, 1")
    a(f"buffer_store_dword v{V_M}, v{V_ZERO}, {ws}, s{S_T0} offen")
    a("s_mov_b64 exec, -1")

def tlog2s(a,k):
    if TLOG:
        a(f"s_memrealtime s[{84+2*(k-4)}:{85+2*(k-4)}]") if False else a(f"s_memrealtime s[{94+2*(k-4)}:{95+2*(k-4)}]")
def tlog2f(a):
    if not TLOG: return
    a("s_mov_b64 exec, 1")
    for k in (4,5,6):
        a(f"v_mov_b32 v255, s{94+2*(k-4)}")
        a(f"buffer_store_dword v255, v{V_ZERO}, {ws}, s{S_T0} offen offset:{4*(k-1)}")
        a("s_nop 1")
    a("s_mov_b64 exec, -1")

def tlog(a):
    if not TLOG: return
    a(f"s_memrealtime s[{S_TS}:{S_TS+1}]")
    a(f"s_lshl_b32 s{S_T0}, s{S_X}, 5")
    a(f"s_add_u32 s{S_T0}, s{S_T0}, s{S_C}")
    a(f"s_lshl_b32 s{S_T0}, s{S_T0}, 6")
    a(f"s_add_u32 s{S_T0}, s{S_T0}, s{S_S}")
    a(f"s_lshl_b32 s{S_T0}, s{S_T0}, 2")
    a(f"s_add_u32 s{S_T0}, s{S_T0}, {WS_TL}")
    a("s_waitcnt lgkmcnt(0)")
    a(f"v_mov_b32 v{V_T}, s{S_TS}")
    a("s_mov_b64 exec, 1")
    a(f"buffer_store_dword v{V_T}, v{V_ZERO}, {ws}, s{S_T0} offen")
    a("s_mov_b64 exec, -1")

def r_compute(a):
    A=lambda mi,tl,p: V_ACC+((mi*2+tl)*2+p)*4
    mf1=[]
    for tl in range(2):
        for t in range(5):
            f=V_F+(t>>1)*4; p=t&1
            for mi in range(2):
                w=V_W1+((t*3+mi)*2+tl)*4
                c = "0" if t<2 else vr(A(mi,tl,p),4)
                mf1.append(f"v_mfma_f32_16x16x32_bf16 {vr(A(mi,tl,p),4)}, {vr(w,4)}, {vr(f,4)}, {c}")
    def comb1(tl):
        o=[]
        for q in range(4):
            o.append(f"v_add_f32_dpp v{A(0,tl,0)+q}, v{A(0,tl,1)+q}, v{A(0,tl,0)+q} row_ror:8 row_mask:0xf bank_mask:0x3")
        for q in range(4):
            o.append(f"v_add_f32_dpp v{A(0,tl,0)+q}, v{A(1,tl,0)+q}, v{A(1,tl,1)+q} row_ror:8 row_mask:0xf bank_mask:0xc")
        o.append(f"ds_write_b128 v{V_WQ}, {vr(A(0,tl,0),4)} offset:{L_QK+tl*1024}")
        return o
    if ILV:
        c0=comb1(0); m2=mf1[:14]
        for m in mf1[14:]:
            m2.append(m+"\n"+"\n".join(c0[:2])); c0=c0[2:]
        assert not c0
        mf1=m2[:13]+[m2[13]+"\ns_nop 3"]+m2[14:]
    a.label("Lr_cgo")
    for m in mf1: a(m)
    a("s_branch Lr_c1")
    a.label("Lr_cloop")
    delay(a,'d')
    h1=spoll(a,[f"buffer_load_dwordx4 v[{V_F}:{V_F+3}], v{V_AD}, {ws}, s{S_OD} offen sc1",
            f"buffer_load_dwordx4 v[{V_F+4}:{V_F+7}], v{V_AD}, {ws}, s{S_OD} offen offset:1024 sc1",
            f"buffer_load_dwordx4 v[{V_F+8}:{V_F+11}], v{V_ADL}, {ws}, s{S_OD} offen sc1"],V_F,mf1,k=KP[0],g=GP[0])
    pcount(a,0)
    a.label("Lr_c1")
    if ILV:
        a("s_nop 6")
        for x in comb1(1): a(x)
    else:
        for tl in range(2):
            for x in comb1(tl): a(x)
    a("s_waitcnt lgkmcnt(0)")
    ev(a,3)
    a("s_barrier")
    ev(a,4)
    stamp(a,1)
    pl_store(a,0,S_S)
    AV=lambda tl,p: V_ACC+(tl*2+p)*4
    for t in range(5):
        f=V_F+(t>>1)*4; p=t&1
        for tl in range(2):
            w=V_W1+((t*3+2)*2+tl)*4
            c = "0" if t<2 else vr(AV(tl,p),4)
            a(f"v_mfma_f32_16x16x32_bf16 {vr(AV(tl,p),4)}, {vr(f,4)}, {vr(w,4)}, {c}")
    ring_offsets(a)
    for tl in range(2):
        for q in range(4):
            a(f"v_mov_b32_dpp v{AV(tl,0)+q}, v{AV(tl,1)+q} quad_perm:[0,1,2,3] row_mask:0xc bank_mask:0xf")
        a(f"ds_write_b128 v{V_WQ}, {vr(AV(tl,0),4)} offset:{L_V+tl*1024}")
    a("s_waitcnt lgkmcnt(0)")
    a("s_mov_b64 exec, 1")
    a(f"ds_add_u32 v{V_ZERO}, v{V_ONE} offset:{L_FV}")
    a("s_mov_b64 exec, -1")
    a(f"s_cmp_eq_u32 s{S_S}, 63")
    a("s_cbranch_scc1 Lr_last")
    a(f"s_add_u32 s{S_S}, s{S_S}, 1")
    a("s_barrier")
    ev(a,5)
    stamp(a,4)
    delay(a,'a2')
    AC=lambda tl,p: V_ACC+(tl*2+p)*4
    def comb3(tl):
        o=[f"v_add_f32_dpp v{AC(tl,0)+q}, v{AC(tl,1)+q}, v{AC(tl,0)+q} row_ror:8 row_mask:0xf bank_mask:0xf" for q in range(4)]
        o.append(f"ds_write_b128 v{V_W3A}, {vr(AC(tl,0),4)} offset:{L_S3+tl*1024}")
        return o
    def m3(ks,tl):
        f=vr(V_F+4*(ks>>1),4); p=ks&1
        return f"v_mfma_f32_16x16x32_bf16 {vr(AC(tl,p),4)}, {vr(V_W3+(ks*3+tl)*4,4)}, {f}, {'0' if ks<2 else vr(AC(tl,p),4)}"
    if ILV:
        mf3=[m3(ks,tl) for tl in range(3) for ks in range(4)]
        c0=comb3(0)
        mf3[7]+="\ns_nop 3"
        mf3[8]+="\n"+"\n".join(c0[:2]); mf3[9]+="\n"+"\n".join(c0[2:4]); mf3[10]+="\n"+c0[4]
    else:
        mf3=[m3(ks,tl) for ks in range(4) for tl in range(3)]
    h3=spoll(a,[f"buffer_load_dwordx4 {vr(V_F+4*p,4)}, v{V_AA2}, {ws}, s{S_OA2} offen offset:{p*1024} sc1" for p in range(2)],V_F,mf3,k=KP[2],g=GP[2],evb=6)
    pcount(a,2)
    if ILV:
        for x in comb3(1): a(x)
        a("s_nop 2")
        for x in comb3(2): a(x)
    else:
        a("s_nop 5")
        for tl in range(3):
            for x in comb3(tl): a(x)
    a("s_waitcnt lgkmcnt(0)")
    ev(a,9)
    a("s_barrier")
    ev(a,10)
    stamp(a,6)
    pl_store(a,2,S_S)
    a("s_barrier")
    ev(a,11)
    ev_dump(a,1)
    stamp(a,8)
    a("s_branch Lr_cloop")
    spoll_retry(a,h1); spoll_retry(a,h3)

def qk_reduce(a, SC, evq=True):
    for w in range(4):
        a(f"ds_read_b64 {vr(V_E+2*w,2)}, v{V_RQ} offset:{w*2048}")
    a("s_waitcnt lgkmcnt(2)")
    for q in range(2): a(f"v_add_f32 v{V_E+q}, v{V_E+q}, v{V_E+2+q}")
    a("s_waitcnt lgkmcnt(0)")
    for q in range(2): a(f"v_add_f32 v{V_E+4+q}, v{V_E+4+q}, v{V_E+6+q}")
    for q in range(2): a(f"v_add_f32 v{V_E+q}, v{V_E+q}, v{V_E+4+q}")
    a(f"v_cvt_pk_bf16_f32 v{V_E}, v{V_E}, v{V_E+1}")
    a(f"buffer_store_dword v{V_E}, v{V_SA}, {ws}, s{S_OA1} offen{SC}")
    if evq: ev(a,1)
    a(f"buffer_store_dword v{V_SENT}, v{V_SA}, {ws}, s{S_RA1} offen{SC}")

def c_arm(a):
    a(f"buffer_store_dwordx4 {vr(V_SENT,4)}, v{V_ADL}, {ws}, s{S_ARM} offen sc1")
def c_arm_masked(a):
    a(f"s_mov_b64 exec, s[{S_M40}:{S_M40+1}]")
    c_arm(a)
    a("s_mov_b64 exec, -1")
def vm_export(a):
    if NOEXP: return
    a(f"buffer_store_dwordx2 {vr(V_VM,2)}, v{V_L8}, {ws}, s{S_VM} offen sc1")
    a(f"buffer_store_dwordx2 {vr(V_VM+2,2)}, v{V_L8}, {ws}, s{S_VM} offen offset:512 sc1")
def s3_reduce(a):
    for w in range(4):
        a(f"ds_read_b128 {vr(V_A2+4*w,4)}, v{V_R3} offset:{w*3072}")
    a("s_waitcnt lgkmcnt(2)")
    for q in range(4): a(f"v_add_f32 v{V_A2+q}, v{V_A2+q}, v{V_A2+4+q}")
    a("s_waitcnt lgkmcnt(0)")
    for q in range(4): a(f"v_add_f32 v{V_A2+8+q}, v{V_A2+8+q}, v{V_A2+12+q}")
    for q in range(4): a(f"v_add_f32 v{V_A2+q}, v{V_A2+q}, v{V_A2+8+q}")
    a(f"buffer_store_dwordx4 {vr(V_A2,4)}, v{V_ADL}, {ws}, s{S_OCW} offen sc1")
    ev(a,6)
    if ARMT=='b4': c_arm(a)

def km_export(a):
    if NOEXP: return
    n=a.newlab("Lfl")
    a(f"s_cmp_eq_u32 s{S_S}, 0")
    a(f"s_cbranch_scc1 {n}")
    a(f"s_sub_u32 s{S_T0}, s{S_FR}, 2048")
    a("s_mov_b64 exec, 1")
    a(f"buffer_store_dword v{V_ONE}, v{V_ZERO}, {ws}, s{S_T0} offen sc1")
    a("s_mov_b64 exec, -1")
    a.label(n)
    e=a.newlab("Lkme")
    for j in range(4):
        n=a.newlab("Lkmn")
        a(f"s_cmp_lg_u32 s{S_J}, {j}")
        a(f"s_cbranch_scc1 {n}")
        a(f"buffer_store_dwordx4 {vr(V_HF+4*j,4)}, v{V_L16}, {ws}, s{S_KM} offen offset:{j*1024} sc1")
        a.label(n)

def r_helpers(a, safe):
    sx="s" if safe else "f"
    SC=" sc1" if safe else ""
    L=lambda n: f"Lr{sx}_{n}"
    a(f"s_cmp_eq_u32 s{S_W}, 5")
    a(f"s_cbranch_scc1 {L('h1')}")
    a(f"s_cmp_eq_u32 s{S_W}, 6")
    a(f"s_cbranch_scc1 {L('h2')}")
    a(f"s_cmp_eq_u32 s{S_W}, 7")
    a(f"s_cbranch_scc1 {L('h3')}")
    a.label(L("h0"))
    ring_offsets(a)
    a("s_barrier")
    qk_reduce(a,SC)
    stamp(a,2)
    a(f"s_cmp_eq_u32 s{S_S}, 63")
    a("s_cbranch_scc1 Lr_last")
    pol_first(a)
    c_offsets(a)
    a(f"s_mov_b64 exec, s[{S_M40}:{S_M40+1}]")
    a("s_barrier")
    a("s_barrier")
    s3_reduce(a)
    a("s_mov_b64 exec, -1")
    stamp(a,7)
    advance(a)
    tlog(a)
    if ARMT=='b4d': delay(a,'e'); c_arm_masked(a)
    a("s_barrier")
    if ARMT=='b5': delay(a,'e'); c_arm_masked(a)
    stamp(a,8)
    a(f"s_branch {L('h0')}")
    a.label(L("h1"))
    kx_read(a)
    ring_offsets(a)
    a(f"s_add_u32 s{S_TGT}, s{S_S}, 1")
    a("s_waitcnt lgkmcnt(0)")
    a("s_barrier")
    qk_reduce(a,SC)
    stamp(a,1)
    delay(a,'a1')
    S0=V_HF+16; S1=V_HF+20; S2=V_HF+24
    mf2=[]
    MX=V_E+11
    for ks in range(4):
        f=vr(V_HF+4*ks,4)
        mf2.append(f"v_mfma_f32_16x16x32_bf16 {vr(S1,4)}, {vr(V_KX+4*ks,4)}, {f}, {'0' if ks==0 else vr(S1,4)}")
        mf2.append(f"v_mfma_f32_16x16x32_bf16 {vr(S2,4)}, {vr(V_KX+16+4*ks,4)}, {f}, {'0' if ks==0 else vr(S2,4)}")
    for ks in range(4):
        f=vr(V_HF+4*ks,4)
        mf2.append(f"v_mfma_f32_16x16x32_bf16 {vr(S0,4)}, {f}, {f}, {vr(V_BIAS,4) if ks==0 else vr(S0,4)}")
    h2=spoll(a,[f"buffer_load_dwordx4 {vr(V_HF+4*ks,4)}, v{V_L16}, {ws}, s{S_OA1} offen offset:{ks*1024} sc1" for ks in range(4)],V_HF,mf2,k=KP[1],g=GP[1],evb=2)
    pcount(a,1)
    a(f"s_cmp_eq_u32 s{S_S}, 63")
    a(f"s_cbranch_scc1 {L('h1last')}")
    a(f"ds_read_b32 v{V_T2}, v{V_ZERO} offset:{L_FVM}")
    a(f"ds_read_b128 {vr(V_VM,4)}, v{V_L16} offset:{L_VM}")
    a(f"v_max3_f32 v{V_M}, v{S1}, v{S1+1}, v{S1+2}")
    a(f"v_max3_f32 v{V_T}, v{S1+3}, v{S2}, v{S2+1}")
    a(f"v_max3_f32 v{V_M}, v{V_M}, v{S2+2}, v{S2+3}")
    a(f"v_max_f32 v{V_M}, v{V_M}, v{V_T}")
    a(f"v_max3_f32 v{V_T}, v{S0}, v{S0+1}, v{S0+2}")
    a(f"v_max3_f32 v{V_M}, v{V_M}, v{V_T}, v{S0+3}")
    a(f"v_mov_b32 v{V_T}, v{V_M}")
    a("s_nop 1")
    a(f"v_permlane32_swap_b32 v{V_M}, v{V_T}")
    a(f"v_max_f32 v{V_M}, v{V_M}, v{V_T}")
    a(f"v_mov_b32 v{V_T}, v{V_M}")
    a("s_nop 1")
    a(f"v_permlane16_swap_b32 v{V_M}, v{V_T}")
    a(f"v_max_f32 v{V_M}, v{V_M}, v{V_T}")
    a(f"v_mul_f32 v{V_M}, s{S_SC}, v{V_M}")
    order=[S1,S1+1,S1+2,S1+3,S2,S2+1,S2+2,S2+3,S0,S0+1,S0+2,S0+3]
    Ls=V_A2; O=[V_A2+8,V_A2+12]
    for i,s in enumerate(order[:8]): a(f"v_fma_f32 v{V_E+i}, v{s}, s{S_SC}, -v{V_M}")
    for i in range(8): a(f"v_exp_f32 v{V_E+i}, v{V_E+i}")
    for i,s in enumerate(order[8:]): a(f"v_fma_f32 v{V_E+8+i}, v{s}, s{S_SC}, -v{V_M}")
    for i in range(4): a(f"v_cvt_pk_bf16_f32 v{V_P+i}, v{V_E+2*i}, v{V_E+2*i+1}")
    a(f"v_exp_f32 v{V_E+8}, v{V_E+8}")
    a(f"v_exp_f32 v{V_E+9}, v{V_E+9}")
    a(f"v_mfma_f32_16x16x32_bf16 {vr(Ls,4)}, {vr(V_ONES,4)}, {vr(V_P,4)}, 0")
    a(f"v_exp_f32 v{V_E+10}, v{V_E+10}")
    a(f"v_exp_f32 v{V_E+11}, v{V_E+11}")
    a(f"v_mfma_f32_16x16x32_bf16 {vr(O[0],4)}, {vr(V_VX,4)}, {vr(V_P,4)}, 0")
    a(f"v_cvt_pk_bf16_f32 v{V_P+4}, v{V_E+8}, v{V_E+9}")
    a(f"v_cvt_pk_bf16_f32 v{V_P+5}, v{V_E+10}, v{V_E+11}")
    a("s_waitcnt lgkmcnt(0)")
    a(f"v_mfma_f32_16x16x32_bf16 {vr(O[1],4)}, {vr(V_VX+4,4)}, {vr(V_P,4)}, 0")
    a(f"v_readfirstlane_b32 s{S_T0}, v{V_T2}")
    a(f"v_mfma_f32_16x16x16_bf16 {vr(Ls,4)}, {vr(V_ONES,2)}, {vr(V_P+4,2)}, {vr(Ls,4)}")
    a(f"s_cmp_ge_u32 s{S_T0}, s{S_TGT}")
    a(f"s_cbranch_scc0 {L('vmw')}")
    a.label(L("vmok"))
    a(f"v_mfma_f32_16x16x16_bf16 {vr(O[0],4)}, {vr(V_VM,2)}, {vr(V_P+4,2)}, {vr(O[0],4)}")
    a("s_nop 0")
    a(f"v_mfma_f32_16x16x16_bf16 {vr(O[1],4)}, {vr(V_VM+2,2)}, {vr(V_P+4,2)}, {vr(O[1],4)}")
    a("s_nop 3")
    a(f"v_rcp_f32 v{V_T}, v{Ls}")
    a("s_mov_b32 exec_lo, 0x00ff00ff")
    a("s_mov_b32 exec_hi, 0x00ff00ff")
    a("s_nop 0")
    for q in range(8): a(f"v_mul_f32 v{O[0]+q}, v{O[0]+q}, v{V_T}")
    for i in range(4): a(f"v_cvt_pk_bf16_f32 v{V_E+i}, v{O[0]+2*i}, v{O[0]+2*i+1}")
    a(f"buffer_store_dwordx4 {vr(V_E,4)}, v{V_AA2}, {ws}, s{S_OA2} offen{SC}")
    ev(a,5)
    a("s_barrier")
    a(f"buffer_store_dwordx4 {vr(V_SENT,4)}, v{V_AA2}, {ws}, s{S_RA2} offen{SC}")
    a("s_mov_b64 exec, -1")
    stamp(a,4)
    if EXPT=='b3': km_export(a); vm_export(a)
    pl_store(a,1,S_S)
    pol_first(a)
    c_offsets(a)
    a(f"s_mov_b64 exec, s[{S_M40}:{S_M40+1}]")
    a("s_barrier")
    s3_reduce(a)
    a("s_mov_b64 exec, -1")
    if EXPT=='b4': km_export(a); vm_export(a)
    if EXPT=='b4d': delay(a,'e'); km_export(a); vm_export(a)
    if ARMT=='b4d': c_arm_masked(a)
    a("s_barrier")
    if EXPT=='b5': delay(a,'e'); km_export(a); vm_export(a)
    if ARMT=='b5': c_arm_masked(a)
    ev_dump(a)
    advance(a)
    stamp(a,8)
    a(f"s_branch {L('h1')}")
    a.label(L("h2last"))
    vm_export(a)
    a("s_branch Lr_last")
    a.label(L("h1last"))
    km_export(a)
    a("s_branch Lr_last")
    a.label(L("vmw"))
    ldsspin(a,L_FVM,S_TGT)
    a(f"ds_read_b128 {vr(V_VM,4)}, v{V_L16} offset:{L_VM}")
    a("s_waitcnt lgkmcnt(0)")
    a(f"s_branch {L('vmok')}")
    spoll_retry(a,h2)
    a.label(L("h2"))
    ring_offsets(a)
    a(f"s_add_u32 s{S_TGT}, s{S_S}, 1")
    a(f"v_mov_b32 v{V_T2}, s{S_TGT}")
    a(f"s_lshl_b32 s{S_TGT}, s{S_TGT}, 2")
    a("s_waitcnt vmcnt(0)")
    a("s_barrier")
    qk_reduce(a,SC)
    stamp(a,1)
    ldsspin(a,L_FV,S_TGT)
    for tl in range(2):
        for w in range(4):
            a(f"ds_read_b128 {vr(V_HF+tl*32+8*w,4)}, v{V_RV0} offset:{w*2048+tl*1024}")
            a(f"ds_read_b128 {vr(V_HF+tl*32+8*w+4,4)}, v{V_RV1} offset:{w*2048+tl*1024}")
    for tl in range(2):
        a(f"s_waitcnt lgkmcnt({8 if tl==0 else 0})")
        b=V_HF+tl*32
        for k in (4,2,1):
            for i in range(k):
                for q in range(4):
                    a(f"v_add_f32 v{b+4*i+q}, v{b+4*i+q}, v{b+4*(i+k)+q}")
        a(f"v_cvt_pk_bf16_f32 v{V_VM+2*tl}, v{b}, v{b+1}")
        a(f"v_cvt_pk_bf16_f32 v{V_VM+2*tl+1}, v{b+2}, v{b+3}")
    a("s_nop 1")
    for i in range(4):
        a(f"v_mov_b32_dpp v{V_VM+i}, v{V_ZERO} quad_perm:[0,1,2,3] row_mask:0x3 bank_mask:0xf")
    a(f"ds_write_b128 v{V_L16}, {vr(V_VM,4)} offset:{L_VM}")
    a("s_waitcnt lgkmcnt(0)")
    a(f"ds_write_b32 v{V_ZERO}, v{V_T2} offset:{L_FVM}")
    stamp(a,2)
    a(f"s_cmp_eq_u32 s{S_S}, 63")
    a(f"s_cbranch_scc1 {L('h2last')}")
    pol_first(a)
    c_offsets(a)
    a(f"s_add_u32 s{S_OCW}, s{S_OC}, 16384")
    a(f"s_add_u32 s{S_T0}, s{S_S}, 1")
    a(f"v_mov_b32 v{V_T2}, s{S_T0}")
    a(f"s_mov_b64 exec, s[{S_M40}:{S_M40+1}]")
    a("s_barrier")
    a("s_waitcnt vmcnt(0)")
    a("s_barrier")
    stamp(a,6)
    delay(a,'c')
    T=V_HF+32
    w4=[]
    for i in range(4):
        for q in range(4): w4.append(f"v_add_f32 v{T+4*i+q}, v{V_HF+8*i+q}, v{V_HF+8*i+4+q}")
    for i in range(2):
        for q in range(4): w4.append(f"v_add_f32 v{T+16+4*i+q}, v{T+8*i+q}, v{T+8*i+4+q}")
    for q in range(4): w4.append(f"v_add_f32 v{T+24+q}, v{T+16+q}, v{T+20+q}")
    w4.append(f"v_cvt_pk_bf16_f32 v{V_E}, v{T+24}, v{T+25}")
    w4.append(f"v_cvt_pk_bf16_f32 v{V_E+1}, v{T+26}, v{T+27}")
    ldc=[f"buffer_load_dwordx4 {vr(V_HF+4*i,4)}, v{V_L16}, {ws}, s{S_OC if i<4 else S_OCW} offen offset:{(i&3)*1280} sc1" for i in range(8)]
    l4r=a.newlab("L4r"); l4d=a.newlab("L4d"); l4m=a.newlab("L4m")
    if OLDS4 and KC>1:
        lok=a.newlab("Lcok")
        for j in range(KC):
            if j: a(f"s_sleep {GC}")
            for l in ldc: a(l)
        a(f"s_mov_b32 s{S_PC}, 0")
        for j in range(KC-1,-1,-1):
            a(f"s_waitcnt vmcnt({8*j})")
            for c in chk_list(V_HF,8,lok,"scc0"): a(c)
        a(f"s_branch {l4r}")
        a.label(lok)
        for x in w4: a(x)
        a(f"s_branch {l4d}")
    elif OLDS4:
        poll(a,ldc,V_HF,f"s[{S_M40}:{S_M40+1}]")
        for x in w4: a(x)
        a(f"s_branch {l4d}")
    a(f"s_mov_b32 s{S_PC}, 0")
    pl_t(a,0)
    ev(a,2)
    for l in ldc: a(l)
    for i in range(4):
        a(f"s_waitcnt vmcnt({6-2*i})")
        for q in range(4): a(w4[4*i+q])
    ev(a,3)
    pl_first(a)
    for x in w4[16:28]: a(x)
    a(f"v_add_f32 v{V_T}, v{T+24}, v{T+25}")
    a(f"v_add_f32 v{V_M}, v{T+26}, v{T+27}")
    a(w4[28])
    a(f"v_cmp_u_f32 vcc, v{V_T}, v{V_M}")
    a(w4[29])
    a(f"s_cbranch_vccnz {l4m}")
    a.label(l4d)
    pcount(a,3); stamp(a,7)
    h4=(l4d,l4r,ldc,f"s[{S_M40}:{S_M40+1}]",V_HF,w4,CGAP,1)
    a(f"buffer_store_dwordx2 {vr(V_E,2)}, v{V_SD}, {ws}, s{S_OD} offen{SC}")
    ev(a,4)
    if DPROBE:
        a("s_mov_b64 exec, 1")
        a(f"buffer_store_dword v{V_T2}, v{V_ZERO}, {ws}, s{S_DFW} offen{SC}")
        a("s_mov_b64 exec, 0xffffffff")
        lp=a.newlab("Ldp"); ldn=a.newlab("Ldpd")
        a(f"s_mov_b32 s{S_PC}, 0")
        a(f"s_sleep {int(DLY['p'])}")
        a(f"buffer_load_dword v{V_HF}, v{V_RV4}, {ws}, s{S_DFR} offen sc1")
        a(f"s_sleep {PRG}")
        a.label(lp)
        a(f"buffer_load_dword v{V_HF+1}, v{V_RV4}, {ws}, s{S_DFR} offen sc1")
        a("s_waitcnt vmcnt(1)")
        a(f"v_cmp_lt_u32 vcc, v{V_HF}, v{V_T2}")
        a(f"s_cbranch_vccz {ldn}")
        a(f"buffer_load_dword v{V_HF}, v{V_RV4}, {ws}, s{S_DFR} offen sc1")
        a("s_waitcnt vmcnt(1)")
        a(f"v_cmp_lt_u32 vcc, v{V_HF+1}, v{V_T2}")
        a(f"s_cbranch_vccz {ldn}")
        a(f"s_add_u32 s{S_PC}, s{S_PC}, 1")
        a(f"s_cmp_lt_u32 s{S_PC}, {POLL_LIMIT}")
        a(f"s_cbranch_scc1 {lp}")
        a.label(ldn)
        a(f"s_mov_b64 exec, s[{S_M40}:{S_M40+1}]")
    a("s_barrier")
    a(f"buffer_store_dwordx2 {vr(V_SENT,2)}, v{V_SD}, {ws}, s{S_RD} offen{SC}")
    a("s_mov_b64 exec, -1")
    stamp(a,8)
    pl_store(a,3,S_S)
    ev_dump(a)
    advance(a)
    a(f"s_branch {L('h2')}")
    a.label(l4m)
    for c in chk_list(V_HF,8,l4d,"scc0"): a(c)
    spoll_retry(a,h4)
    a.label(L("h3"))
    ring_offsets(a)
    a("s_barrier")
    qk_reduce(a,SC,False)
    a(f"s_cmp_eq_u32 s{S_S}, 63")
    a("s_cbranch_scc1 Lr_last")
    a(f"s_cmp_ge_u32 s{S_S}, 60")
    a(f"s_cbranch_scc1 {L('h3nopf')}")
    flag_check(a)
    if not NOPF: l2_prefetch(a)
    flag_load(a)
    a.label(L("h3nopf"))
    a("s_waitcnt vmcnt(0)")
    a("s_barrier")
    a("s_barrier")
    a(f"s_cmp_ge_u32 s{S_S}, 61")
    a(f"s_cbranch_scc1 {L('h3b')}")
    delay(a,'aux')
    if not NODMA: dma_issue(a)
    a.label(L("h3b"))
    advance(a)
    a("s_waitcnt lgkmcnt(0)")
    a("s_barrier")
    a(f"s_branch {L('h3')}")

def r_last(a, endlab):
    a.label("Lr_last")
    a("s_mov_b64 exec, -1")
    a("s_waitcnt vmcnt(0)")
    a("s_barrier")
    a(f"s_cmp_lg_u32 s{S_W}, 7")
    a("s_cbranch_scc1 Lr_fin")
    a("s_mov_b64 exec, 1")
    a(f"buffer_store_dword v{V_ONE}, v{V_ZERO}, {ws}, s{S_FR} offen sc1")
    a("s_mov_b64 exec, -1")
    a.label("Lr_fin")
    if PROF:
        a(f"s_lshl_b32 s{S_T0}, s{S_X}, 5")
        a(f"s_add_u32 s{S_T0}, s{S_T0}, s{S_C}")
        a(f"s_lshl_b32 s{S_T0}, s{S_T0}, 3")
        a(f"s_add_u32 s{S_T0}, s{S_T0}, s{S_W}")
        a(f"s_lshl_b32 s{S_T0}, s{S_T0}, 7")
        a(f"s_add_u32 s{S_T0}, s{S_T0}, {WS_KS}")
        for i in range(20):
            a(f"v_mov_b32 v{V_T}, s{S_ACC0+i}")
            a(f"buffer_store_dword v{V_T}, v{V_ZERO}, {ws}, s{S_T0} offen offset:{4*i}")
            a("s_nop 1")
    a(f"s_branch {endlab}")

def r_all(a, endlab):
    r_setup(a)
    r_compute(a)
    a.label("Lr_hgo")
    a(f"s_cmp_lg_u32 s{S_SAFE}, 0")
    a("s_cbranch_scc1 Lr_hsafe")
    r_helpers(a,False)
    a.label("Lr_hsafe")
    r_helpers(a,True)
    r_last(a,endlab)
```

```python
from common import *
import math, struct
import rx4 as P
from rx4 import *
L_FVM=36
L_VM=1024; L_QK=2048; L_M=6144; KST=576; L_S3=18432; L_KX=30720; KXS=10240; L_VW=16384+65536
L_ST=16384
V_LANE=1; V_AD=2; V_AA2=3; V_L16=4; V_MW=5; V_ZERO=6; V_TRM=7; V_R3=8; V_QW=9; V_IDX=10; V_T=11; V_T2=12; V_M=13; V_L8=14; V_ADL=15; V_ONE=16; V_W3A=17; V_TRQ=18; V_R3B=19
V_F=20
V_ACC=36
V_X=48
V_W=96
V_HF=20; V_KX=48; V_VX=80; V_VM=88; V_P6=36
NV=256
DLY=dict(d=3,a2=3,c=12,aux=0,e=10)
PRE3=False; WIDE=False; LPF=0; COOP=False; KD=1; GD=2; KA=1; GA=2
def dly(a,k):
    if DLY[k]>0: a(f"s_sleep {int(DLY[k])}")
SM="v_smfmac_f32_16x16x64_bf16"
def e6(a,k): P.ev(a,k)
def e6d(a,adj=0):
    b=Asm(); b.nlab=a.nlab; P.ev_dump(b,adj); a.nlab=b.nlab
    for x in b.lines: a.lines.append(x.replace("v255",f"v{V_T}"))

def rings(a):
    a(f"s_and_b32 s{S_T0}, s{S_S}, 3")
    a(f"s_add_u32 s{S_T1}, s{S_S}, 2")
    a(f"s_and_b32 s{S_T1}, s{S_T1}, 3")
    a(f"s_lshl_b32 s{S_OA2}, s{S_T0}, 16")
    a(f"s_add_u32 s{S_OA2}, s{S_OA2}, s{S_BA2}")
    a(f"s_lshl_b32 s{S_RA2}, s{S_T1}, 16")
    a(f"s_add_u32 s{S_RA2}, s{S_RA2}, s{S_BA2}")
    a(f"s_add_u32 s{S_T0}, s{S_S}, 1")
    a(f"s_and_b32 s{S_T0}, s{S_T0}, 3")
    a(f"s_mul_i32 s{S_OD}, s{S_T0}, {4*10240}")
    a(f"s_add_u32 s{S_OD}, s{S_OD}, s{S_BD}")
    a(f"s_add_u32 s{S_T1}, s{S_S}, 3")
    a(f"s_and_b32 s{S_T1}, s{S_T1}, 3")
    a(f"s_mul_i32 s{S_RD}, s{S_T1}, {4*10240}")
    a(f"s_add_u32 s{S_RD}, s{S_RD}, s{S_BD}")

def adv(a):
    a(f"s_add_u32 s{S_S}, s{S_S}, 1")
    a(f"s_add_u32 s{S_KM}, s{S_KM}, {32*4096}")
    a(f"s_add_u32 s{S_VM}, s{S_VM}, {32*4096}")
    a(f"s_add_u32 s{S_FR}, s{S_FR}, 2048")
    a(f"s_add_u32 s{S_LSL}, s{S_LSL}, {KXS}")
    a(f"s_cmp_eq_u32 s{S_LSL}, {L_KX+3*KXS}")
    a(f"s_cselect_b32 s{S_LSL}, {L_KX}, s{S_LSL}")

def setup(a):
    a("s_setprio 3")
    tlog2(a,0)
    a(f"s_lshr_b32 s{S_T0}, s{S_C}, 2")
    a(f"s_lshl_b32 s{S_H}, s{S_X}, 3")
    a(f"s_add_u32 s{S_H}, s{S_H}, s{S_T0}")
    a(f"s_and_b32 s{S_J}, s{S_C}, 3")
    a(f"v_lshlrev_b32 v{V_L16}, 4, v{V_LANE}")
    a(f"v_lshlrev_b32 v{V_L8}, 3, v{V_LANE}")
    G=36; N=37; TR=38; TMP=39; FR=40; HI=41; RR=42; CC=43; DM=44; TP=46
    a(f"v_lshrrev_b32 v{G}, 4, v{V_LANE}")
    a(f"v_and_b32 v{N}, 15, v{V_LANE}")
    a(f"v_lshrrev_b32 v{RR}, 2, v{N}")
    a(f"v_and_b32 v{CC}, 3, v{N}")
    a(f"s_load_dwordx8 s[64:71], s[0:1], {ARG['Wq']}")
    a(f"s_load_dwordx2 s[72:73], s[0:1], {ARG['mem0']}")
    a(f"v_lshrrev_b32 v{DM}, 2, v{V_LANE}")
    a(f"v_lshlrev_b32 v{DM}, 13, v{DM}")
    a(f"v_and_b32 v{TMP}, 3, v{V_LANE}")
    a(f"v_lshl_add_u32 v{DM}, v{TMP}, 4, v{DM}")
    a(f"s_lshl_b32 s74, s{S_H}, 8")
    a(f"s_and_b32 s{S_T0}, s{S_W}, 3")
    a(f"s_lshl_b32 s{S_T0}, s{S_T0}, 6")
    a(f"s_add_u32 s74, s74, s{S_T0}")
    a(f"s_lshl_b32 s{S_LSW}, s{S_W}, 13")
    a(f"s_add_u32 s{S_LSW}, s{S_LSW}, {L_ST}")
    a("s_waitcnt lgkmcnt(0)")
    if LPF:
        a("v_lshrrev_b32 v30, 7, v0")
        a("v_lshlrev_b32 v30, 13, v30")
        a("v_and_b32 v31, 127, v0")
        a("v_lshl_add_u32 v30, v31, 4, v30")
        a(f"s_mul_i32 s78, s{S_C}, {20*8192}")
        a(f"s_lshl_b32 s{S_T0}, s{S_X}, 11")
        a(f"s_add_u32 s78, s78, s{S_T0}")
        for mi in range(LPF):
            srd(a,S_TA,64+2*mi,SZ['Wq'])
            for i in range(5):
                a(f"s_add_u32 s{S_T1}, s78, {i*4*8192}")
                a(f"buffer_load_dwordx4 v[{100+4*(i&3)}:{103+4*(i&3)}], v30, s[{S_TA}:{S_TA+3}], s{S_T1} offen")
    a(f"s_cmp_ge_u32 s{S_W}, 4")
    a("s_cselect_b64 s[76:77], s[66:67], s[64:65]")
    srd(a,S_TA,76,SZ['Wq'])
    def dma_round(rd, srdn, scol):
        for i in range(8):
            a(f"s_add_u32 m0, s{S_LSW}, {(rd&1)*65536+i*1024}")
            a(f"s_add_u32 s{S_T1}, s{scol}, {(rd*128+i*16)*8192}")
            a(f"buffer_load_dwordx4 v{DM}, s[{srdn}:{srdn+3}], s{S_T1} offen lds")
    if WIDE:
        DW=35
        a(f"v_lshlrev_b32 v{DW}, 13, v{G}")
        a(f"v_lshl_add_u32 v{DW}, v{N}, 4, v{DW}")
        a(f"s_lshl_b32 s79, s{S_H}, 8")
        a(f"s_and_b32 s{S_T0}, s{S_W}, 3")
        a(f"s_lshl_b32 s{S_T0}, s{S_T0}, 18")
        a(f"s_add_u32 s79, s79, s{S_T0}")
        def dma_round(rd, srdn, scol):
            for i in range(8):
                a(f"s_add_u32 m0, s{S_LSW}, {(rd&1)*65536+i*1024}")
                a(f"s_add_u32 s{S_T1}, s79, {(rd*128+i*4)*8192}")
                a(f"buffer_load_dwordx4 v{DW}, s[{srdn}:{srdn+3}], s{S_T1} offen lds")
    if COOP:
        a(f"s_and_b32 s79, s{S_W}, 3")
        a("s_mul_i32 s79, s79, 3")
        a("s_min_u32 s79, s79, 7")
        a(f"s_lshl_b32 s74, s{S_H}, 8")
        a(f"s_lshl_b32 s{S_T0}, s{S_J}, 6")
        a(f"s_add_u32 s74, s74, s{S_T0}")
        a(f"s_lshl_b32 s{S_T0}, s79, 19")
        a(f"s_add_u32 s74, s74, s{S_T0}")
        for i in range(12):
            a(f"s_add_u32 m0, s{S_LSW}, {(i>>3)*65536+(i&7)*1024}")
            a(f"s_add_u32 s{S_T1}, s74, {i*16*8192}")
            a(f"buffer_load_dwordx4 v{DM}, s[{S_TA}:{S_TA+3}], s{S_T1} offen lds")
    else:
        dma_round(0,S_TA,74); dma_round(1,S_TA,74)
    a(f"s_mov_b32 s{S_M40}, -1")
    a(f"s_mov_b32 s{S_M40+1}, 0xff")
    a(f"s_mul_i32 s{S_BD}, s{S_X}, 10240")
    a(f"s_add_u32 s{S_BD}, s{S_BD}, {X_D}")
    a(f"s_lshr_b32 s{S_T0}, s{S_C}, 1")
    a(f"s_lshl_b32 s{S_OCB}, s{S_T0}, 15")
    a(f"s_and_b32 s{S_T0}, s{S_C}, 1")
    a(f"s_mul_i32 s{S_T0}, s{S_T0}, 640")
    a(f"s_add_u32 s{S_OCB}, s{S_OCB}, s{S_T0}")
    a(f"s_and_b32 s{S_T0}, s{S_C}, 15")
    a(f"s_lshl_b32 s{S_X640}, s{S_T0}, 15")
    a(f"s_lshr_b32 s{S_T0}, s{S_X}, 1")
    a(f"s_lshl_b32 s{S_T0}, s{S_T0}, 14")
    a(f"s_add_u32 s{S_X640}, s{S_X640}, s{S_T0}")
    a(f"s_and_b32 s{S_T0}, s{S_X}, 1")
    a(f"s_lshl_b32 s{S_T0}, s{S_T0}, 1")
    a(f"s_lshr_b32 s{S_T1}, s{S_C}, 4")
    a(f"s_add_u32 s{S_T0}, s{S_T0}, s{S_T1}")
    a(f"s_mul_i32 s{S_T0}, s{S_T0}, 1280")
    a(f"s_add_u32 s{S_X640}, s{S_X640}, s{S_T0}")
    a(f"s_lshl_b32 s{S_BA2}, s{S_X}, 14")
    a(f"s_add_u32 s{S_BA2}, s{S_BA2}, {X_A2}")
    a(f"s_mov_b32 s{S_S}, 0")
    a(f"s_lshl_b32 s{S_KM}, s{S_H}, 12")
    a(f"s_lshl_b32 s{S_T0}, s{S_J}, 10")
    a(f"s_add_u32 s{S_VM}, s{S_KM}, s{S_T0}")
    a(f"s_add_u32 s{S_KM}, s{S_KM}, {WS_KM}")
    a(f"s_add_u32 s{S_VM}, s{S_VM}, {WS_VM}")
    a(f"s_mov_b32 s{S_LSL}, {L_KX}")
    a(f"s_mov_b32 s{S_LSD}, {L_KX}")
    a(f"s_lshl_b32 s{S_KXO}, s{S_H}, 13")
    a(f"s_lshl_b32 s{S_T0}, s{S_J}, 11")
    a(f"s_add_u32 s{S_VXO}, s{S_KXO}, s{S_T0}")
    a(f"s_add_u32 s{S_KXO}, s{S_KXO}, {WS_KX}")
    a(f"s_add_u32 s{S_VXO}, s{S_VXO}, {WS_VX}")
    a(f"s_lshl_b32 s{S_FKV}, s{S_H}, 6")
    a(f"s_add_u32 s{S_FKV}, s{S_FKV}, {C5_REC}")
    a(f"s_lshl_b32 s{S_FR}, s{S_J}, 2")
    a(f"s_add_u32 s{S_FR}, s{S_FR}, s{S_FKV}")
    a(f"s_add_u32 s{S_FR}, s{S_FR}, 32")
    a(f"s_mov_b32 s{S_SC}, {f32((128**-0.5)*math.log2(math.e))}")
    a(f"v_and_b32 v{FR}, 7, v{N}")
    a(f"v_lshl_add_u32 v{FR}, v{G}, 3, v{FR}")
    a(f"v_lshlrev_b32 v{FR}, 4, v{FR}")
    a(f"v_lshrrev_b32 v{HI}, 3, v{N}")
    a(f"v_mov_b32 v{V_IDX}, 0x4444")
    a(f"v_mov_b32 v{TMP}, 0xeeee")
    a(f"v_cmp_le_u32 vcc, 8, v{N}")
    a("s_nop 1")
    a(f"v_cndmask_b32 v{V_IDX}, v{V_IDX}, v{TMP}, vcc")
    a(f"s_lshl_b32 s{S_T0}, s{S_W}, 11")
    a(f"v_add_u32 v{V_AD}, s{S_T0}, v{V_L16}")
    a(f"v_lshrrev_b32 v{TMP}, 9, v{V_AD}")
    a(f"v_lshl_add_u32 v{V_MW}, v{TMP}, 6, v{V_AD}")
    a(f"v_add_u32 v{V_MW}, {L_M}, v{V_MW}")
    a(f"v_lshl_add_u32 v{V_TRM}, v{G}, 3, v{RR}")
    a(f"v_lshlrev_b32 v{V_TRM}, 4, v{V_TRM}")
    a(f"v_and_b32 v{TMP}, 1, v{CC}")
    a(f"v_lshl_add_u32 v{V_TRM}, v{TMP}, 3, v{V_TRM}")
    a(f"v_lshrrev_b32 v{TMP}, 1, v{CC}")
    a(f"v_mul_u32_u24 v{TMP}, {KST}, v{TMP}")
    a(f"v_add3_u32 v{V_TRM}, v{V_TRM}, v{TMP}, s{S_S}")
    a(f"v_add_u32 v{V_TRM}, {L_M}, v{V_TRM}")
    a(f"v_lshrrev_b32 v{TMP}, 5, v{V_LANE}")
    a(f"v_lshl_add_u32 v{V_QW}, v{TMP}, 4, v{N}")
    a(f"v_lshlrev_b32 v{V_QW}, 5, v{V_QW}")
    a(f"v_and_b32 v{TMP}, 1, v{G}")
    a(f"v_lshl_add_u32 v{V_QW}, v{TMP}, 3, v{V_QW}")
    a(f"s_and_b32 s{S_T0}, s{S_W}, 3")
    a(f"s_lshl_b32 s{S_T0}, s{S_T0}, 10")
    a(f"s_lshr_b32 s{S_T1}, s{S_W}, 2")
    a(f"s_lshl_b32 s{S_T1}, s{S_T1}, 4")
    a(f"s_add_u32 s{S_T0}, s{S_T0}, s{S_T1}")
    a(f"s_add_u32 s{S_T0}, s{S_T0}, {L_QK}")
    a(f"v_add_u32 v{V_QW}, s{S_T0}, v{V_QW}")
    a(f"v_lshl_add_u32 v{V_TRQ}, v{G}, 2, v{RR}")
    a(f"v_lshlrev_b32 v{V_TRQ}, 5, v{V_TRQ}")
    a(f"v_lshl_add_u32 v{V_TRQ}, v{CC}, 3, v{V_TRQ}")
    a(f"v_add_u32 v{V_TRQ}, {L_QK}, v{V_TRQ}")
    a(f"s_lshr_b32 s{S_T0}, s{S_C}, 4")
    a(f"s_lshl_b32 s{S_T0}, s{S_T0}, 2")
    a(f"s_add_u32 s{S_T0}, s{S_T0}, s{S_W}")
    a(f"s_lshl_b32 s{S_T0}, s{S_T0}, 11")
    a(f"v_lshl_add_u32 v{V_AA2}, v{HI}, 9, v{FR}")
    a(f"v_add_u32 v{V_AA2}, s{S_T0}, v{V_AA2}")
    l=a.newlab("L6")
    a(f"s_cmp_lg_u32 s{S_W}, 6")
    a(f"s_cbranch_scc1 {l}")
    a(f"s_lshl_b32 s{S_T0}, s{S_C}, 9")
    a(f"v_add_u32 v{V_AA2}, s{S_T0}, v{FR}")
    a.label(l)
    a(f"s_mul_i32 s{S_T0}, s{S_W}, 3072")
    a(f"s_add_u32 s{S_T0}, s{S_T0}, {L_S3}")
    a(f"v_add_u32 v{V_W3A}, s{S_T0}, v{V_L16}")
    a(f"s_and_b32 s{S_T0}, s{S_W}, 1")
    a(f"s_mul_i32 s{S_T1}, s{S_T0}, 640")
    a(f"v_add_u32 v{V_ADL}, s{S_T1}, v{V_L16}")
    a(f"s_mul_i32 s{S_T0}, s{S_T0}, 20")
    a(f"v_lshrrev_b32 v{TMP}, 1, v{V_LANE}")
    a(f"v_add_u32 v{TMP}, s{S_T0}, v{TMP}")
    a(f"v_and_b32 v{V_R3}, 15, v{TMP}")
    a(f"v_and_b32 v{TR}, 1, v{V_LANE}")
    a(f"v_lshl_add_u32 v{V_R3}, v{TR}, 4, v{V_R3}")
    a(f"v_lshlrev_b32 v{V_R3}, 4, v{V_R3}")
    a(f"v_lshrrev_b32 v{TMP}, 4, v{TMP}")
    a(f"v_lshl_add_u32 v{V_R3}, v{TMP}, 10, v{V_R3}")
    a(f"v_add_u32 v{V_R3}, {L_S3}, v{V_R3}")
    a(f"s_mul_i32 s{S_T0}, s{S_C}, 320")
    a(f"v_add_u32 v{V_R3B}, s{S_T0}, v{V_L8}")
    a(f"v_lshl_add_u32 v{TR}, v{G}, 2, v{RR}")
    a(f"v_lshlrev_b32 v{TR}, 6, v{TR}")
    a(f"v_lshl_add_u32 v{TR}, v{CC}, 3, v{TR}")
    a(f"v_add_u32 v{TR}, s{S_LSW}, v{TR}")
    a(f"v_add_u32 v{TP+1}, 65536, v{TR}")
    if WIDE:
        TW=33
        a(f"v_lshl_add_u32 v{TW}, v{G}, 2, v{RR}")
        a(f"v_lshlrev_b32 v{TW}, 8, v{TW}")
        a(f"v_lshl_add_u32 v{TW}, v{CC}, 3, v{TW}")
        a(f"s_lshr_b32 s{S_T0}, s{S_W}, 2")
        a(f"s_lshl_b32 s{S_T0}, s{S_T0}, 15")
        a(f"s_and_b32 s{S_T1}, s{S_W}, 3")
        a(f"s_lshl_b32 s{S_T1}, s{S_T1}, 6")
        a(f"s_add_u32 s{S_T0}, s{S_T0}, s{S_T1}")
        a(f"s_add_u32 s{S_T0}, s{S_T0}, {L_ST}")
        a(f"v_add_u32 v{TW}, s{S_T0}, v{TW}")
        a(f"v_add_u32 v{TW+1}, 65536, v{TW}")
    def take(rd, dst):
        ad=TR if rd%2==0 else TP+1
        RS=64
        if WIDE:
            ad=TW+(rd&1); RS=256
            a("s_barrier")
        tmp=V_X
        for pp in range(2):
            for tl in range(2):
                for half in range(2):
                    for hh in range(2):
                        t=tmp+((pp*2+tl)*4+half*2+hh)*2
                        a(f"ds_read_b64_tr_b16 {vr(t,2)}, v{ad} offset:{(pp*64+half*32+hh*16)*RS+tl*32}")
        a("s_waitcnt lgkmcnt(0)")
        if WIDE: a("s_barrier")
        for pp in range(2):
            for tl in range(2):
                d=dst(pp,tl)
                for half in range(2):
                    for hh in range(2):
                        t=tmp+((pp*2+tl)*4+half*2+hh)*2
                        a(f"v_mov_b32 v{d+4*hh+half}, v{t}")
                        a(f"v_mov_b32 v{d+4*hh+2+half}, v{t+1}")
    srd(a,S_TB,70,SZ['Wo'])
    a("s_mov_b32 s88, s68"); a("s_and_b32 s89, s69, 0xffff"); a(f"s_mov_b32 s90, {SZ['Wq']}"); a("s_mov_b32 s91, 0x00020000")
    a(f"s_lshl_b32 s78, s{S_H}, 8")
    a(f"s_lshl_b32 s{S_T0}, s{S_J}, 6")
    a(f"s_add_u32 s78, s78, s{S_T0}")
    a(f"s_min_u32 s{S_T0}, s{S_W}, 4")
    a(f"s_lshl_b32 s{S_T0}, s{S_T0}, 20")
    a(f"s_add_u32 s78, s78, s{S_T0}")
    DO=45
    a(f"v_lshrrev_b32 v{DO}, 3, v{V_LANE}")
    a(f"v_mul_u32_u24 v{DO}, 1280, v{DO}")
    a(f"v_and_b32 v{TMP}, 7, v{V_LANE}")
    a(f"v_lshl_add_u32 v{DO}, v{TMP}, 4, v{DO}")
    a(f"s_lshl_b32 s{S_T0}, s{S_X}, 1")
    a(f"s_lshr_b32 s{S_T1}, s{S_C}, 4")
    a(f"s_add_u32 s{S_T0}, s{S_T0}, s{S_T1}")
    a(f"s_lshl_b32 s{S_T0}, s{S_T0}, 2")
    a(f"s_and_b32 s{S_T1}, s{S_W}, 3")
    a(f"s_add_u32 s{S_T0}, s{S_T0}, s{S_T1}")
    a(f"s_mul_i32 s75, s{S_T0}, {128*1280}")
    a(f"s_and_b32 s{S_T1}, s{S_C}, 15")
    a(f"s_mul_i32 s{S_T1}, s{S_T1}, 80")
    a(f"s_add_u32 s75, s75, s{S_T1}")
    def dma_v(buf):
        for i in range(8):
            a(f"s_add_u32 m0, s{S_LSW}, {buf*65536+i*1024}")
            a(f"s_add_u32 s{S_T1}, s78, {i*16*8192}")
            a(f"buffer_load_dwordx4 v{DM}, s[88:91], s{S_T1} offen lds")
    def dma_o(hf,buf):
        for i in range(8):
            a(f"s_add_u32 m0, s{S_LSW}, {buf*65536+i*1024}")
            a(f"s_add_u32 s{S_T1}, s75, {(hf*64+i*8)*1280}")
            a(f"buffer_load_dwordx4 v{DO}, s[{S_TB}:{S_TB+3}], s{S_T1} offen lds")
    lend=a.newlab("L6e")
    if COOP:
        a("s_waitcnt vmcnt(0)")
        take(0, lambda pp,tl: V_W+(pp*2+tl)*8)
        take(1, lambda pp,tl: V_W+((2+pp)*2+tl)*8)
        a(f"s_lshl_b32 s{S_T0}, s{S_H}, 3")
        a(f"s_and_b32 s{S_T1}, s{S_W}, 4")
        a(f"s_add_u32 s{S_T0}, s{S_T0}, s{S_T1}")
        a(f"s_add_u32 s{S_T0}, s{S_T0}, s{S_J}")
        a(f"s_mul_i32 s{S_T0}, s{S_T0}, 10")
        a(f"s_add_u32 s{S_T0}, s{S_T0}, s79")
        a(f"s_lshl_b32 s{S_T0}, s{S_T0}, 12")
        a(f"s_add_u32 s79, s{S_T0}, {WS_WF}")
        ls=a.newlab("L6s"); ld=a.newlab("L6d")
        a(f"s_cmp_lg_u32 s{S_SAFE}, 0")
        a(f"s_cbranch_scc1 {ls}")
        for SCX in (""," sc1"):
            for p in range(3):
                a(f"s_add_u32 s{S_T0}, s79, {p*4096}")
                for k in range(4):
                    a(f"buffer_store_dwordx4 {vr(V_W+p*16+k*4,4)}, v{V_L16}, {ws}, s{S_T0} offen offset:{k*1024}{SCX}")
            if SCX=="":
                a(f"s_branch {ld}")
                a.label(ls)
        a.label(ld)
        if P.HOOK_VERIFY:
            l=a.newlab("L6")
            a(f"s_cmp_lg_u32 s{S_W}, 7")
            a(f"s_cbranch_scc1 {l}")
            a(f"s_cmp_lg_u32 s{S_SAFE}, 0")
            a(f"s_cbranch_scc1 {l}")
            P.HOOK_VERIFY(a)
            a.label(l)
        a("s_waitcnt vmcnt(0)")
        a("s_barrier")
        b=Asm(); b.nlab=a.nlab; P.hook_verdict(b); a.nlab=b.nlab
        for x in b.lines: a.lines.append(x.replace("v[44:45]","v[30:31]").replace("v44","v30").replace("v45","v31").replace("v46","v32"))
        a("s_mov_b32 s88, s68"); a("s_and_b32 s89, s69, 0xffff"); a(f"s_mov_b32 s90, {SZ['Wq']}"); a("s_mov_b32 s91, 0x00020000")
        a(f"s_lshl_b32 s77, s{S_H}, 4")
        a(f"s_add_u32 s77, s77, {C5_POL}")
        l=a.newlab("L6")
        a(f"s_cmp_lg_u32 s{S_W}, 7")
        a(f"s_cbranch_scc1 {l}")
        a(f"s_lshl_b32 s{S_T0}, s{S_J}, 2")
        a(f"s_add_u32 s{S_T0}, s{S_T0}, s77")
        a("s_mov_b64 exec, 1")
        a(f"buffer_store_dword v{V_ONE}, v{V_ZERO}, {ws}, s{S_T0} offen sc1")
        a("s_mov_b64 exec, -1")
        a.label(l)
        lab=a.newlab("L6ab"); lb=a.newlab("L6b"); lb2=a.newlab("L6b2")
        a(f"s_cmp_ge_u32 s{S_W}, 5")
        a(f"s_cbranch_scc1 {lend}")
        dma_v(1)
        a(f"s_cmp_eq_u32 s{S_W}, 4")
        a(f"s_cbranch_scc1 {lb}")
        dma_o(0,0)
        a("s_waitcnt vmcnt(8)")
        a(f"s_branch {lb2}")
        a.label(lb)
        a("s_waitcnt vmcnt(0)")
        a.label(lb2)
    else:
        for rd in range(4):
            a("s_waitcnt vmcnt(8)")
            take(rd, lambda pp,tl: V_W+((2*rd+pp)*2+tl)*8)
            if rd+2<5: dma_round(rd+2,S_TA,74)
        lab=a.newlab("L6ab"); lb=a.newlab("L6b"); lb2=a.newlab("L6b2")
        a(f"s_cmp_lt_u32 s{S_W}, 5")
        a(f"s_cbranch_scc1 {lab}")
        a("s_waitcnt vmcnt(0)")
        take(4, lambda pp,tl: V_W+((8+pp)*2+tl)*8)
        a(f"s_branch {lend}")
        a.label(lab)
        dma_v(1)
        a("s_waitcnt vmcnt(8)")
        take(4, lambda pp,tl: V_W+((8+pp)*2+tl)*8)
        a(f"s_cmp_eq_u32 s{S_W}, 4")
        a(f"s_cbranch_scc1 {lb}")
        dma_o(0,0)
        a("s_waitcnt vmcnt(8)")
        a(f"s_branch {lb2}")
        a.label(lb)
        a("s_waitcnt vmcnt(0)")
        a.label(lb2)
    for pp in range(2):
        for tl in range(2):
            for half in range(2):
                for hh in range(2):
                    t=V_X+((pp*2+tl)*4+half*2+hh)*2
                    a(f"ds_read_b64_tr_b16 {vr(t,2)}, v{TP+1} offset:{(pp*64+half*32+hh*16)*64+tl*32}")
    a("s_waitcnt lgkmcnt(0)")
    a(f"v_add_u32 v{TP}, s{S_LSW}, v{V_L16}")
    a(f"v_add_u32 v{TP}, 65536, v{TP}")
    for pp in range(2):
        for tl in range(2):
            for half in range(2):
                for hh in range(2):
                    t=V_X+((pp*2+tl)*4+half*2+hh)*2
                    o=((pp*2+tl)*2+hh)*1024+half*4
                    a(f"ds_write_b32 v{TP}, v{t} offset:{o}")
                    a(f"ds_write_b32 v{TP}, v{t+1} offset:{o+8}")
    a(f"s_cmp_eq_u32 s{S_W}, 4")
    a(f"s_cbranch_scc1 {lend}")
    a(f"v_and_b32 v{TMP}, 1, v{G}")
    a(f"v_lshlrev_b32 v{TMP}, 4, v{TMP}")
    a(f"v_lshrrev_b32 v{TP}, 1, v{G}")
    a(f"v_lshl_add_u32 v{TMP}, v{TP}, 2, v{TMP}")
    a(f"v_add_u32 v{TMP}, v{TMP}, v{RR}")
    a(f"v_lshlrev_b32 v{TMP}, 7, v{TMP}")
    a(f"v_lshl_add_u32 v{TMP}, v{CC}, 3, v{TMP}")
    a(f"v_add_u32 v{TMP}, s{S_LSW}, v{TMP}")
    def take_o(pp):
        for tl in range(3):
            for grp in range(2):
                pass
            for half in range(2):
                for hh in range(2):
                    a(f"ds_read_b64_tr_b16 {vr(V_F+(half*2+hh)*2,2)}, v{TMP} offset:{(half*32+hh*8)*128+tl*32}")
            a("s_waitcnt lgkmcnt(0)")
            d=V_X+(pp*3+tl)*8
            for half in range(2):
                for hh in range(2):
                    t=V_F+(half*2+hh)*2
                    a(f"v_mov_b32 v{d+4*hh+half}, v{t}")
                    a(f"v_mov_b32 v{d+4*hh+2+half}, v{t+1}")
    a("s_waitcnt vmcnt(0) lgkmcnt(0)")
    take_o(0)
    dma_o(1,0)
    a("s_waitcnt vmcnt(0)")
    take_o(1)
    a.label(lend)
    if COOP:
        lp=a.newlab("L6p"); lq=a.newlab("L6q")
        a(f"s_and_b32 s{S_T0}, s{S_W}, 3")
        a(f"s_lshl_b32 s{S_T0}, s{S_T0}, 2")
        a(f"s_add_u32 s77, s77, s{S_T0}")
        a("s_mov_b64 exec, 1")
        a.label(lp)
        a(f"buffer_load_dword v{V_T}, v{V_ZERO}, {ws}, s77 offen sc1")
        a("s_waitcnt vmcnt(0)")
        a(f"v_cmp_eq_u32 vcc, 0, v{V_T}")
        a(f"s_cbranch_vccz {lq}")
        a("s_sleep 4")
        a(f"s_branch {lp}")
        a.label(lq)
        a("s_mov_b64 exec, -1")
        a(f"s_lshl_b32 s{S_T0}, s{S_H}, 3")
        a(f"s_add_u32 s{S_T0}, s{S_T0}, s{S_W}")
        a(f"s_mul_i32 s{S_T0}, s{S_T0}, 40960")
        a(f"s_add_u32 s79, s{S_T0}, {WS_WF}")
        for p in range(10):
            a(f"s_add_u32 s{S_T0}, s79, {p*4096}")
            for k in range(4):
                a(f"buffer_load_dwordx4 {vr(V_W+p*16+k*4,4)}, v{V_L16}, {ws}, s{S_T0} offen offset:{k*1024} sc1")
    srd(a,S_TA,72,SZ['mem0'])
    a(f"v_lshlrev_b32 v{TP}, 1, v0")
    for rr in range(8):
        a(f"s_mov_b32 s{S_T0}, {rr*1280}")
        a(f"buffer_load_ushort v{V_F+rr}, v{TP}, s[{S_TA}:{S_TA+3}], s{S_T0} offen")
        a(f"buffer_load_ushort v{V_F+8+rr}, v{TP}, s[{S_TA}:{S_TA+3}], s{S_T0} offen offset:1024")
    a("s_waitcnt vmcnt(0) lgkmcnt(0)")
    if P.HOOK_VERIFY and not COOP:
        l=a.newlab("L6")
        a(f"s_cmp_lg_u32 s{S_W}, 7")
        a(f"s_cbranch_scc1 {l}")
        a(f"s_cmp_lg_u32 s{S_SAFE}, 0")
        a(f"s_cbranch_scc1 {l}")
        P.HOOK_VERIFY(a)
        a.label(l)
    tlog2(a,1)
    a("s_barrier")
    if not COOP: P.hook_verdict(a)
    lnv=a.newlab("L6")
    for k in range(2):
        for i in range(4):
            a(f"v_lshl_or_b32 v{36+i}, v{V_F+8*k+2*i+1}, 16, v{V_F+8*k+2*i}")
        a(f"v_add_u32 v40, {512*k}, v0")
        a("v_lshrrev_b32 v41, 5, v40")
        a("v_lshlrev_b32 v41, 6, v41")
        a("v_lshl_add_u32 v41, v40, 4, v41")
        if k==1:
            l=a.newlab("L6")
            a(f"s_cmp_ge_u32 s{S_W}, 2")
            a(f"s_cbranch_scc1 {l}")
        a(f"ds_write_b128 v41, v[36:39] offset:{L_M}")
        if k==1: a.label(l)
    a(f"ds_write_b32 v{V_ZERO}, v{V_ZERO} offset:{L_FVM}")
    l=a.newlab("L6")
    a(f"s_cmp_lg_u32 s{S_W}, 4")
    a(f"s_cbranch_scc1 {l}")
    pol6(a)
    a.label(l)
    l=a.newlab("L6")
    a(f"s_cmp_lg_u32 s{S_W}, 5")
    a(f"s_cbranch_scc1 {l}")
    flag_load(a); flag_check(a); tlog2(a,4); dma6(a)
    flag_load(a); flag_check(a); dma6(a)
    a("s_waitcnt vmcnt(10)")
    a.label(l)
    l=a.newlab("L6")
    a(f"s_cmp_lg_u32 s{S_W}, 7")
    a(f"s_cbranch_scc1 {l}")
    a(f"s_lshl_b32 s{S_T0}, s{S_J}, 11")
    a(f"s_add_u32 s{S_PKX}, s{S_KXO}, s{S_T0}")
    a(f"s_add_u32 s{S_PKX}, s{S_PKX}, {2*32*8192}")
    a(f"s_add_u32 s{S_PVX}, s{S_VXO}, {2*32*8192}")
    a(f"s_add_u32 s{S_FKV}, s{S_FKV}, 4096")
    flag_load(a); flag_check(a); l2_prefetch(a)
    flag_load(a)
    a.label(l)
    a("s_waitcnt lgkmcnt(0)")
L_VWT=L_VW
def pol6(a):
    b=Asm(); b.nlab=a.nlab; P.pol_measure(b); a.nlab=b.nlab
    for x in b.lines: a.lines.append(x.replace("v252","v40").replace("v253","v41").replace("v[252:253]","v[40:41]"))
def polr6(a, base):
    l=a.newlab("Lpf")
    a(f"s_cmp_lg_u32 s{S_S}, 0")
    a(f"s_cbranch_scc1 {l}")
    b=Asm(); b.nlab=a.nlab; P.pol_read(b); a.nlab=b.nlab
    for x in b.lines:
        x=x.replace("v[252:255]",f"v[{base}:{base+3}]")
        for i in range(4): x=x.replace(f"v{252+i}",f"v{base+i}")
        a.lines.append(x)
    a.label(l)
def dma6(a):
    for i in range(8):
        a(f"s_add_u32 m0, s{S_LSD}, {i*1024}")
        a(f"s_add_u32 s{S_T0}, s{S_KXO}, {i*1024}")
        a(f"buffer_load_dwordx4 v{V_L16}, {ws}, s{S_T0} offen lds")
    for i in range(2):
        a(f"s_add_u32 m0, s{S_LSD}, {8192+i*1024}")
        a(f"s_add_u32 s{S_T0}, s{S_VXO}, {i*1024}")
        a(f"buffer_load_dwordx4 v{V_L16}, {ws}, s{S_T0} offen lds")
    a(f"s_add_u32 s{S_KXO}, s{S_KXO}, {32*8192}")
    a(f"s_add_u32 s{S_VXO}, s{S_VXO}, {32*8192}")
    a(f"s_add_u32 s{S_LSD}, s{S_LSD}, {KXS}")
    a(f"s_cmp_eq_u32 s{S_LSD}, {L_KX+3*KXS}")
    a(f"s_cselect_b32 s{S_LSD}, {L_KX}, s{S_LSD}")

S1F=[False]
def s1_qk(a, vw=False):
    A0=V_ACC; A1=V_ACC+4
    def rd(p):
        f=V_F+(p&3)*4
        a(f"ds_read_b64_tr_b16 {vr(f,2)}, v{V_TRM} offset:{2*p*KST}")
        a(f"ds_read_b64_tr_b16 {vr(f+2,2)}, v{V_TRM} offset:{2*p*KST+64}")
    for p in range(3):
        if p==2 and vw and KD>1: a("s_waitcnt vmcnt(0)")
        rd(p)
    for p in range(10):
        if p+3<10: rd(p+3)
        left=min(3,9-p)
        a(f"s_waitcnt lgkmcnt({2*left})")
        f=vr(V_F+(p&3)*4,4)
        a(f"{SM} {vr(A0,4)}, {f}, {vr(V_W+(p*2)*8,8)}, v{V_IDX}")
        a(f"{SM} {vr(A1,4)}, {f}, {vr(V_W+(p*2+1)*8,8)}, v{V_IDX}")
    a("s_nop 7")
    for q in range(4): a(f"v_permlane32_swap_b32 v{A0+q}, v{A1+q}")
    for q in range(4): a(f"v_add_f32 v{A0+q}, v{A0+q}, v{A1+q}")
    a(f"v_cvt_pk_bf16_f32 v{V_ACC+8}, v{A0}, v{A0+1}")
    a(f"v_cvt_pk_bf16_f32 v{V_ACC+9}, v{A0+2}, v{A0+3}")
    a(f"ds_write_b64 v{V_QW}, {vr(V_ACC+8,2)}")
    a("s_waitcnt lgkmcnt(0)")
def zacc(a,n=8):
    for i in range(n): a(f"v_mov_b32 v{V_ACC+i}, 0")
def kpoll(a, loads, base, k, g):
    if k==1:
        poll(a,loads,base); return
    n=len(loads); ok=a.newlab("Lkok")
    for j in range(k-1):
        for l in loads: a(l)
        a(f"s_sleep {g}")
    lrest=a.newlab("Lkr")
    for l in loads: a(l)
    for j in range(k-1,0,-1):
        a(f"s_waitcnt vmcnt({j*n})")
        for c in chk_list(base,n,ok,"scc0"): a(c)
    b=Asm(); b.nlab=a.nlab; poll(b,loads,base); a.nlab=b.nlab
    skip=0
    for x in b.lines:
        if skip<n and "buffer_load" in x: skip+=1; continue
        a.lines.append(x)
    a.label(ok)
def dpoll(a):
    dly(a,'d')
    kpoll(a,[f"buffer_load_dwordx4 {vr(V_F+8+4*i,4)}, v{V_AD}, {ws}, s{S_OD} offen offset:{i*1024} sc1" for i in range(2)],V_F+8,KD,GD)
    a(f"ds_write_b128 v{V_MW}, {vr(V_F+8,4)}")
    a(f"ds_write_b128 v{V_MW}, {vr(V_F+12,4)} offset:{2*KST}")
    a("s_waitcnt lgkmcnt(0)")
    if KD>1: S1F[0]=True
def red3(a, T, hf=1):
    two = (not PRE3) or hf==1
    for w in range(4):
        a(f"ds_read_b128 {vr(T+8*w,4)}, v{V_R3} offset:{w*3072}")
        if two: a(f"ds_read_b128 {vr(T+8*w+4,4)}, v{V_R3C if PRE3 else V_R3} offset:{w*3072+(0 if PRE3 else 512)}")
    if two:
        for w in range(4):
            a(f"s_waitcnt lgkmcnt({6-2*w})")
            for q in range(4): a(f"v_add_f32 v{T+8*w+q}, v{T+8*w+q}, v{T+8*w+4+q}")
            if w==1:
                for q in range(4): a(f"v_add_f32 v{T+q}, v{T+q}, v{T+8+q}")
    else:
        a("s_waitcnt lgkmcnt(2)")
        for q in range(4): a(f"v_add_f32 v{T+q}, v{T+q}, v{T+8+q}")
        a("s_waitcnt lgkmcnt(0)")
    for q in range(4): a(f"v_add_f32 v{T+16+q}, v{T+16+q}, v{T+24+q}")
    for q in range(4): a(f"v_add_f32 v{T+q}, v{T+q}, v{T+16+q}")
    a(f"buffer_store_dwordx4 {vr(T,4)}, v{V_ADL}, {ws}, s{S_OCW} offen sc1")
def arm6(a,SENT):
    a(f"buffer_store_dwordx4 {vr(SENT,4)}, v{V_ADL}, {ws}, s{S_ARM} offen sc1")

def vtile(a,tl):
    zacc(a,4)
    B=[48,56,64,72]
    a(f"v_add_u32 v{V_T2}, {L_VW+tl*2048}, v{V_L16}")
    def rdv(p):
        f=V_F+(p&3)*4; b=B[p&3]
        a(f"ds_read_b64_tr_b16 {vr(f,2)}, v{V_TRM} offset:{2*p*KST}")
        a(f"ds_read_b64_tr_b16 {vr(f+2,2)}, v{V_TRM} offset:{2*p*KST+64}")
        a(f"ds_read_b128 {vr(b,4)}, v{V_T2} offset:{p*4096}")
        a(f"ds_read_b128 {vr(b+4,4)}, v{V_T2} offset:{p*4096+1024}")
    for p in range(3): rdv(p)
    for p in range(10):
        if p+3<10: rdv(p+3)
        a(f"s_waitcnt lgkmcnt({4*min(3,9-p)})")
        a(f"{SM} {vr(V_ACC,4)}, {vr(V_F+(p&3)*4,4)}, {vr(B[p&3],8)}, v{V_IDX}")
    a("s_nop 7")
    for q in range(4): a(f"v_mov_b32 v{80+q}, v{V_ACC+q}")
    a("s_nop 1")
    for q in range(4): a(f"v_permlane32_swap_b32 v{80+q}, v{V_ACC+q}")
    for q in range(4): a(f"v_add_f32 v{80+q}, v{80+q}, v{V_ACC+q}")
    for i in range(2): a(f"v_cvt_pk_bf16_f32 v{84+i}, v{80+2*i}, v{80+2*i+1}")
    a("s_nop 1")
    for i in range(2): a(f"v_mov_b32_dpp v{84+i}, v{V_ZERO} quad_perm:[0,1,2,3] row_mask:0x3 bank_mask:0xf")
    a(f"ds_write_b64 v{V_L16}, v[84:85] offset:{L_VM+tl*8}")
    a("s_waitcnt lgkmcnt(0)")
    a("s_mov_b64 exec, 1")
    a(f"ds_add_u32 v{V_ZERO}, v{V_ONE} offset:{L_FVM}")
    a("s_mov_b64 exec, -1")

def loops(a, safe):
    sx="s" if safe else "f"
    SC=" sc1" if safe else ""
    L=lambda n: f"L6{sx}_{n}"
    for w in (4,5,6,7):
        a(f"s_cmp_eq_u32 s{S_W}, {w}")
        a(f"s_cbranch_scc1 {L('w%d'%w)}")
    a(f"s_lshl_b32 s{S_T0}, s{S_J}, 11")
    a(f"s_lshl_b32 s{S_T1}, s{S_W}, 9")
    a(f"s_add_u32 s{S_PKX}, s{S_KXO}, s{S_T0}")
    a(f"s_add_u32 s{S_PKX}, s{S_PKX}, s{S_T1}")
    a(f"s_add_u32 s{S_PKX}, s{S_PKX}, {3*32*8192}")
    a(f"s_add_u32 s{S_PVX}, s{S_VXO}, s{S_T1}")
    a(f"s_add_u32 s{S_PVX}, s{S_PVX}, {3*32*8192}")
    zacc(a)
    a(f"s_branch {L('c_bm')}")
    a.label(L("c"))
    e6(a,0)
    dpoll(a)
    e6(a,1)
    a.label(L("c_bm"))
    a("s_barrier")
    e6(a,2)
    s1_qk(a,True)
    e6(a,4)
    a("s_barrier")
    e6(a,5)
    a(f"s_cmp_eq_u32 s{S_S}, 63")
    a("s_cbranch_scc1 L6_last")
    rings(a)
    a(f"s_add_u32 s{S_S}, s{S_S}, 1")
    zacc(a,12)
    a("s_barrier")
    e6(a,6)
    dly(a,'a2')
    kpoll(a,[f"buffer_load_dwordx4 {vr(V_F+4*p,4)}, v{V_AA2}, {ws}, s{S_OA2} offen offset:{p*1024} sc1" for p in range(2)],V_F,KA,GA)
    e6(a,7)
    for tl in range(3):
        for pp in range(2):
            a(f"{SM} {vr(V_ACC+4*tl,4)}, {vr(V_F+4*pp,4)}, {vr(V_X+(pp*3+tl)*8,8)}, v{V_IDX}")
    if PRE3:
        a("s_nop 5")
        for q in range(4): a(f"v_permlane32_swap_b32 v{V_ACC+q}, v{V_ACC+4+q}")
        a(f"ds_write_b128 v{V_W3A}, {vr(V_ACC+8,4)} offset:1024")
        for q in range(4): a(f"v_add_f32 v{V_ACC+q}, v{V_ACC+q}, v{V_ACC+4+q}")
        a(f"ds_write_b128 v{V_W3A}, {vr(V_ACC,4)}")
    else:
        a("s_nop 3")
        a(f"ds_write_b128 v{V_W3A}, {vr(V_ACC,4)}")
        a("s_nop 0")
        a(f"ds_write_b128 v{V_W3A}, {vr(V_ACC+4,4)} offset:1024")
        a("s_nop 0")
        a(f"ds_write_b128 v{V_W3A}, {vr(V_ACC+8,4)} offset:2048")
    a("s_waitcnt lgkmcnt(0)")
    e6(a,8)
    a("s_barrier")
    e6(a,9)
    zacc(a)
    a(f"s_cmp_ge_u32 s{S_S}, 61")
    a(f"s_cbranch_scc1 {L('cnp')}")
    for i in range(4):
        a(f"s_add_u32 s{S_T0}, s{S_PKX}, {i*128}")
        a(f"s_buffer_load_dword s{92+i}, {ws}, s{S_T0} glc")
        a(f"s_add_u32 s{S_T1}, s{S_PVX}, {i*128}")
        a(f"s_buffer_load_dword s{96+i}, {ws}, s{S_T1} glc")
    a(f"s_add_u32 s{S_PKX}, s{S_PKX}, {32*8192}")
    a(f"s_add_u32 s{S_PVX}, s{S_PVX}, {32*8192}")
    a.label(L("cnp"))
    a("s_barrier")
    e6(a,10)
    e6d(a,1)
    a(f"s_branch {L('c')}")
    SENT=92
    a.label(L("w4"))
    for i in range(4): a(f"v_mov_b32 v{SENT+i}, -1")
    zacc(a)
    a(f"s_branch {L('w4_bm')}")
    a.label(L("w4l"))
    dpoll(a)
    a.label(L("w4_bm"))
    a("s_barrier")
    s1_qk(a,True)
    a("s_barrier")
    vtile(a,0)
    e6(a,0)
    a(f"s_cmp_eq_u32 s{S_S}, 63")
    a("s_cbranch_scc1 L6_last")
    rings(a)
    polr6(a,80)
    c_offsets(a)
    zacc(a)
    a(f"s_mov_b64 exec, s[{S_M40}:{S_M40+1}]")
    a("s_barrier")
    a("s_barrier")
    red3(a,48)
    e6(a,1)
    e6d(a)
    adv(a)
    tlog(a)
    a(f"s_mov_b64 exec, s[{S_M40}:{S_M40+1}]")
    dly(a,'e')
    arm6(a,SENT)
    a("s_mov_b64 exec, -1")
    a("s_barrier")
    a(f"s_branch {L('w4l')}")
    a.label(L("w5"))
    for i in range(4): a(f"v_mov_b32 v{SENT+i}, -1")
    a.label(L("w5l"))
    zacc(a)
    a("s_waitcnt lgkmcnt(0)")
    a("s_barrier")
    s1_qk(a)
    a("s_barrier")
    vtile(a,1)
    a(f"s_cmp_eq_u32 s{S_S}, 63")
    a("s_cbranch_scc1 L6_last")
    polr6(a,80)
    c_offsets(a)
    a("s_waitcnt vmcnt(0) lgkmcnt(0)")
    a(f"s_mov_b64 exec, s[{S_M40}:{S_M40+1}]")
    a("s_barrier")
    a("s_barrier")
    red3(a,48)
    a("s_mov_b64 exec, -1")
    a(f"s_cmp_ge_u32 s{S_S}, 61")
    a(f"s_cbranch_scc1 {L('w5d')}")
    if not P.NODMA: dma6(a)
    a.label(L("w5d"))
    adv(a)
    a(f"s_mov_b64 exec, s[{S_M40}:{S_M40+1}]")
    a(f"s_sleep {max(1,int(DLY['e'])-3)}")
    arm6(a,SENT)
    a("s_mov_b64 exec, -1")
    a("s_barrier")
    a(f"s_branch {L('w5l')}")
    a.label(L("w6"))
    a.label(L("w6l"))
    zacc(a)
    a("s_barrier")
    s1_qk(a)
    a(f"v_add_u32 v{V_T2}, s{S_LSL}, v{V_L16}")
    for i in range(10):
        a(f"ds_read_b128 {vr(V_KX+4*i,4)}, v{V_T2} offset:{i*1024}")
    a("s_barrier")
    for ks in range(4):
        a(f"ds_read_b64_tr_b16 {vr(V_HF+4*ks,2)}, v{V_TRQ} offset:{ks*1024}")
        a(f"ds_read_b64_tr_b16 {vr(V_HF+4*ks+2,2)}, v{V_TRQ} offset:{ks*1024+512}")
    a(f"s_cmp_eq_u32 s{S_S}, 63")
    a(f"s_cbranch_scc1 {L('w6last')}")
    S1=36; S2=40; S0=44
    for ks in range(4):
        a(f"s_waitcnt lgkmcnt({6-2*ks})")
        f=vr(V_HF+4*ks,4)
        a(f"v_mfma_f32_16x16x32_bf16 {vr(S1,4)}, {vr(V_KX+4*ks,4)}, {f}, {'0' if ks==0 else vr(S1,4)}")
        a(f"v_mfma_f32_16x16x32_bf16 {vr(S2,4)}, {vr(V_KX+16+4*ks,4)}, {f}, {'0' if ks==0 else vr(S2,4)}")
    for ks in range(4):
        f=vr(V_HF+4*ks,4)
        a(f"v_mfma_f32_16x16x32_bf16 {vr(S0,4)}, {f}, {f}, {'0' if ks==0 else vr(S0,4)}")
        if ks==0: rings(a)
    e6(a,0)
    a(f"s_lshl_b32 s{S_TGT}, s{S_S}, 1")
    a(f"s_add_u32 s{S_TGT}, s{S_TGT}, 2")
    a(f"v_mov_b32 v92, 0xf149f2ca")
    a(f"v_max3_f32 v{V_M}, v{S1}, v{S1+1}, v{S1+2}")
    a(f"v_max3_f32 v{V_T}, v{S1+3}, v{S2}, v{S2+1}")
    a(f"v_max3_f32 v{V_M}, v{V_M}, v{S2+2}, v{S2+3}")
    a(f"v_max_f32 v{V_M}, v{V_M}, v{V_T}")
    a("s_nop 1")
    for q in range(4): a(f"v_mov_b32_dpp v{S0+q}, v92 quad_perm:[0,1,2,3] row_mask:0x3 bank_mask:0xf")
    a(f"v_max3_f32 v{V_T}, v{S0}, v{S0+1}, v{S0+2}")
    a(f"v_max3_f32 v{V_M}, v{V_M}, v{V_T}, v{S0+3}")
    a(f"v_mov_b32 v{V_T}, v{V_M}")
    a("s_nop 1")
    a(f"v_permlane32_swap_b32 v{V_M}, v{V_T}")
    a(f"v_max_f32 v{V_M}, v{V_M}, v{V_T}")
    a(f"v_mov_b32 v{V_T}, v{V_M}")
    a("s_nop 1")
    a(f"v_permlane16_swap_b32 v{V_M}, v{V_T}")
    a(f"v_max_f32 v{V_M}, v{V_M}, v{V_T}")
    a(f"v_mul_f32 v{V_M}, s{S_SC}, v{V_M}")
    PP=48; ON=56; Ls=60; O=[64,68]
    for i in range(8): a(f"v_fma_f32 v{S1+i}, v{S1+i}, s{S_SC}, -v{V_M}")
    for i in range(8): a(f"v_exp_f32 v{S1+i}, v{S1+i}")
    for i in range(4): a(f"v_fma_f32 v{S0+i}, v{S0+i}, s{S_SC}, -v{V_M}")
    a(f"ds_read_b32 v{V_T2}, v{V_ZERO} offset:{L_FVM}")
    a(f"ds_read_b128 {vr(V_VM,4)}, v{V_L16} offset:{L_VM}")
    for i in range(4): a(f"v_cvt_pk_bf16_f32 v{PP+i}, v{S1+2*i}, v{S1+2*i+1}")
    for i in range(4): a(f"v_mov_b32 v{ON+i}, 0x3f803f80")
    a(f"v_exp_f32 v{S0}, v{S0}")
    a(f"v_exp_f32 v{S0+1}, v{S0+1}")
    a(f"v_mfma_f32_16x16x32_bf16 {vr(Ls,4)}, {vr(ON,4)}, {vr(PP,4)}, 0")
    a(f"v_exp_f32 v{S0+2}, v{S0+2}")
    a(f"v_exp_f32 v{S0+3}, v{S0+3}")
    a(f"v_mfma_f32_16x16x32_bf16 {vr(O[0],4)}, {vr(V_VX,4)}, {vr(PP,4)}, 0")
    a(f"v_cvt_pk_bf16_f32 v{PP+4}, v{S0}, v{S0+1}")
    a(f"v_cvt_pk_bf16_f32 v{PP+5}, v{S0+2}, v{S0+3}")
    a(f"v_mfma_f32_16x16x32_bf16 {vr(O[1],4)}, {vr(V_VX+4,4)}, {vr(PP,4)}, 0")
    a("s_waitcnt lgkmcnt(0)")
    a(f"v_readfirstlane_b32 s{S_T0}, v{V_T2}")
    a(f"v_mfma_f32_16x16x16_bf16 {vr(Ls,4)}, {vr(ON,2)}, {vr(PP+4,2)}, {vr(Ls,4)}")
    a(f"s_cmp_ge_u32 s{S_T0}, s{S_TGT}")
    a(f"s_cbranch_scc0 {L('vmw')}")
    a.label(L("vmok"))
    a(f"v_mfma_f32_16x16x16_bf16 {vr(O[0],4)}, {vr(V_VM,2)}, {vr(PP+4,2)}, {vr(O[0],4)}")
    a(f"v_mfma_f32_16x16x16_bf16 {vr(O[1],4)}, {vr(V_VM+2,2)}, {vr(PP+4,2)}, {vr(O[1],4)}")
    a("s_nop 3")
    a(f"v_rcp_f32 v{V_T}, v{Ls}")
    a("s_mov_b32 exec_lo, 0x00ff00ff")
    a("s_mov_b32 exec_hi, 0x00ff00ff")
    a("s_nop 0")
    for q in range(8): a(f"v_mul_f32 v{O[0]+q}, v{O[0]+q}, v{V_T}")
    for i in range(4): a(f"v_cvt_pk_bf16_f32 v{72+i}, v{O[0]+2*i}, v{O[0]+2*i+1}")
    a(f"buffer_store_dwordx4 v[72:75], v{V_AA2}, {ws}, s{S_OA2} offen{SC}")
    e6(a,1)
    a("s_barrier")
    for i in range(4): a(f"v_mov_b32 v{76+i}, -1")
    a(f"buffer_store_dwordx4 v[76:79], v{V_AA2}, {ws}, s{S_RA2} offen{SC}")
    a("s_mov_b64 exec, -1")
    a("s_waitcnt vmcnt(0)")
    a("s_barrier")
    a(f"s_sleep {int(DLY['e'])+3}")
    exp6(a)
    e6d(a)
    adv(a)
    a("s_barrier")
    a(f"s_branch {L('w6l')}")
    a.label(L("vmw"))
    ldsspin(a,L_FVM,S_TGT)
    a(f"ds_read_b128 {vr(V_VM,4)}, v{V_L16} offset:{L_VM}")
    a("s_waitcnt lgkmcnt(0)")
    a(f"s_branch {L('vmok')}")
    a.label(L("w6last"))
    a(f"s_lshl_b32 s{S_TGT}, s{S_S}, 1")
    a(f"s_add_u32 s{S_TGT}, s{S_TGT}, 2")
    ldsspin(a,L_FVM,S_TGT)
    a(f"ds_read_b128 {vr(V_VM,4)}, v{V_L16} offset:{L_VM}")
    a("s_waitcnt lgkmcnt(0) vmcnt(0)")
    exp6(a)
    a("s_branch L6_last")
    a.label(L("w7"))
    for i in range(2): a(f"v_mov_b32 v{SENT+i}, -1")
    a.label(L("w7l"))
    zacc(a)
    a("s_waitcnt lgkmcnt(0)")
    a("s_barrier")
    s1_qk(a)
    a("s_barrier")
    a(f"s_cmp_eq_u32 s{S_S}, 63")
    a("s_cbranch_scc1 L6_last")
    rings(a)
    polr6(a,80)
    c_offsets(a)
    a(f"s_add_u32 s{S_OCW}, s{S_OC}, 16384")
    a(f"s_cmp_ge_u32 s{S_S}, 60")
    a(f"s_cbranch_scc1 {L('w7n')}")
    flag_check(a)
    flag_load(a)
    a.label(L("w7n"))
    a(f"s_mov_b64 exec, s[{S_M40}:{S_M40+1}]")
    a("s_barrier")
    a("s_barrier")
    dly(a,'c')
    T=48
    poll(a,[f"buffer_load_dwordx4 {vr(T+4*i,4)}, v{V_L16}, {ws}, s{S_OC if i<4 else S_OCW} offen offset:{(i&3)*1280} sc1" for i in range(8)],T,f"s[{S_M40}:{S_M40+1}]")
    for k in (4,2,1):
        for i in range(k):
            for q in range(4):
                a(f"v_add_f32 v{T+4*i+q}, v{T+4*i+q}, v{T+4*(i+k)+q}")
    a(f"v_cvt_pk_bf16_f32 v80, v{T}, v{T+1}")
    a(f"v_cvt_pk_bf16_f32 v81, v{T+2}, v{T+3}")
    a(f"buffer_store_dwordx2 v[80:81], v{V_R3B}, {ws}, s{S_OD} offen{SC}")
    a("s_barrier")
    a(f"buffer_store_dwordx2 {vr(SENT,2)}, v{V_R3B}, {ws}, s{S_RD} offen{SC}")
    a("s_mov_b64 exec, -1")
    adv(a)
    a(f"s_branch {L('w7l')}")

def exp6(a):
    if P.NOEXP: return
    n=a.newlab("Lfl")
    a(f"s_cmp_eq_u32 s{S_S}, 0")
    a(f"s_cbranch_scc1 {n}")
    a(f"s_sub_u32 s{S_T0}, s{S_FR}, 2048")
    a("s_mov_b64 exec, 1")
    a(f"buffer_store_dword v{V_ONE}, v{V_ZERO}, {ws}, s{S_T0} offen sc1")
    a("s_mov_b64 exec, -1")
    a.label(n)
    for j in range(4):
        n=a.newlab("Lkmn")
        a(f"s_cmp_lg_u32 s{S_J}, {j}")
        a(f"s_cbranch_scc1 {n}")
        a(f"buffer_store_dwordx4 {vr(V_HF+4*j,4)}, v{V_L16}, {ws}, s{S_KM} offen offset:{j*1024} sc1")
        a.label(n)
    a(f"buffer_store_dwordx2 {vr(V_VM,2)}, v{V_L8}, {ws}, s{S_VM} offen sc1")
    a(f"buffer_store_dwordx2 {vr(V_VM+2,2)}, v{V_L8}, {ws}, s{S_VM} offen offset:512 sc1")

def r_all(a, endlab):
    setup(a)
    a(f"s_cmp_lg_u32 s{S_SAFE}, 0")
    a("s_cbranch_scc1 L6_safe")
    loops(a,False)
    a.label("L6_safe")
    loops(a,True)
    a.label("L6_last")
    a("s_mov_b64 exec, -1")
    a(f"s_cmp_lg_u32 s{S_W}, 6")
    a(f"s_cbranch_scc1 {endlab}")
    a("s_waitcnt vmcnt(0)")
    a("s_mov_b64 exec, 1")
    a(f"buffer_store_dword v{V_ONE}, v{V_ZERO}, {ws}, s{S_FR} offen sc1")
    a(f"s_branch {endlab}")
```

```python
import sys, main5, rx4, bx4, rx6
for kv in sys.argv[2:]:
    k,v=kv.split("=")
    if k=="TLOG": bx4.TLOG=eval(v)
    if k in ("STAG","NEARLY"): setattr(bx4,k,int(v)); continue
    if k=="DBG": bx4.DBG=set(v.split(",")); continue
    if k in ("KD","GD","KA","GA","LPF","WIDE"): setattr(rx6,k,int(v)); continue
    if k in rx6.DLY: rx6.DLY[k]=float(v)
    if k in rx4.DLY: rx4.DLY[k]=float(v)
    elif hasattr(rx4,k) and k not in ("FORCE_SAFE","NO_B","RMAP"): setattr(rx4,k,eval(v))
    else: setattr(main5,k,eval(v))
main5.build_all(sys.argv[1] if sys.argv[1].startswith("/") else "dev/"+sys.argv[1])
```
